```python
import torch

def _softmax(x, axis=-1):
    return torch.softmax(x, dim=axis)
def _gelu(x):
    return torch.nn.functional.gelu(x, approximate="tanh")
def _silu(x):
    return torch.nn.functional.silu(x)
def _sigmoid(x):
    return torch.sigmoid(x)
def _layernorm(x, axis=-1, eps=1e-5):
    m = x.mean(dim=axis, keepdim=True)
    v = x.var(dim=axis, keepdim=True, unbiased=False)
    return (x - m) / torch.sqrt(v + eps)
def _scatter_add(tgt, idx, src, axis=0):
    return tgt.clone().index_add_(axis, idx, src)
def _segment_sum(src, seg, n):
    out = torch.zeros((n,) + src.shape[1:], dtype=src.dtype)
    return out.index_add_(0, seg, src)
def _pad(x, pw):
    flat = tuple(v for pair in reversed(pw) for v in pair)
    return torch.nn.functional.pad(x, flat)

kernel_name = 'interleave_layers__linear_attn_block__geglu_ffn__prompt'

def setup_inputs():

    _w = (lambda a: (lambda t: t.to(torch.bfloat16) if t.is_floating_point() else t)(torch.as_tensor(a)))
    def _A_setup():
        B, S, D = 1, 2048, 576
        return {
            "x": _w((lambda *s: torch.randn(*s, dtype=torch.bfloat16) * 0.05)(B, S, D)),
            "wqkv": _w((lambda *s: torch.randn(*s, dtype=torch.bfloat16) * 0.05)(D, 3 * D)),
            "wo": _w((lambda *s: torch.randn(*s, dtype=torch.bfloat16) * 0.05)(D, D)),
        }
    _A_in = _A_setup()

    def _B_setup():
        B, S, D, F = 1, 2048, 576, 4608
        return {
            "x": _w((lambda *s: torch.randn(*s, dtype=torch.bfloat16) * 0.05)(B, S, D)),
            "w_gate": _w((lambda *s: torch.randn(*s, dtype=torch.bfloat16) * 0.05)(D, F)),
            "w_up": _w((lambda *s: torch.randn(*s, dtype=torch.bfloat16) * 0.05)(D, F)),
            "w_down": _w((lambda *s: torch.randn(*s, dtype=torch.bfloat16) * 0.05)(F, D)),
        }
    _B_in = _B_setup()

    return {
        "A_x": _A_in["x"],
        "A_wqkv": _A_in["wqkv"],
        "A_wo": _A_in["wo"],
        "B_x": _B_in["x"],
        "B_w_gate": _B_in["w_gate"],
        "B_w_up": _B_in["w_up"],
        "B_w_down": _B_in["w_down"],
    }

def reference(A_x, A_wqkv, A_wo, B_x, B_w_gate, B_w_up, B_w_down):
    def _A_ref(x, wqkv, wo):
        B, S, D = x.shape
        H = 32; Dh = D // H
        qkv = (lambda x, *d: x.permute(*d))((x @ wqkv).reshape(B, S, 3, H, Dh), 2, 0, 3, 1, 4)
        q, k, v = qkv[0], qkv[1], qkv[2]
        phi = lambda t: torch.where(t > 0, t + 1, torch.exp(t)) + 1e-6
        pq, pk = phi(q), phi(k)
        kv = torch.einsum("bhsd,bhse->bhde", pk, v)
        z = torch.einsum("bhsd->bhd", pk)
        num = torch.einsum("bhqd,bhde->bhqe", pq, kv)
        den = torch.einsum("bhqd,bhd->bhq", pq, z)[..., None] + 1e-6
        o = num / den
        return (lambda x, *d: x.permute(*d))(o, 0, 2, 1, 3).reshape(B, S, D) @ wo

    def _B_ref(x, w_gate, w_up, w_down):
        return (_gelu(x @ w_gate) * (x @ w_up)) @ w_down

    x = A_x
    x = x + _A_ref(_layernorm(x, axis=-1), A_wqkv, A_wo)
    x = x + _B_ref(_layernorm(x, axis=-1), B_w_gate, B_w_up, B_w_down)
    x = x + _A_ref(_layernorm(x, axis=-1), A_wqkv, A_wo)
    x = x + _B_ref(_layernorm(x, axis=-1), B_w_gate, B_w_up, B_w_down)
    return x
```

```python
import re

_REG = re.compile(r"^(-|abs\()?([vas])(\d+)\)?$")
_RNG = re.compile(r"^(-)?([vas])\[(\d+):(\d+)\]$")


def regs_of(op):
    op = op.strip()
    m = _REG.match(op)
    if m:
        return [(m.group(2), int(m.group(3)))]
    m = _RNG.match(op)
    if m:
        return [(m.group(2), i) for i in range(int(m.group(3)), int(m.group(4)) + 1)]
    if op == "vcc":
        return [("s", "vcc_lo"), ("s", "vcc_hi")]
    if op in ("vcc_lo", "vcc_hi"):
        return [("s", op)]
    if op == "exec":
        return [("x", "exec")]
    if op == "m0":
        return [("s", "m0")]
    return []


TRANS = ("v_exp_f32", "v_log_f32", "v_rcp_f32", "v_rsq_f32", "v_sqrt_f32", "v_sin_f32", "v_cos_f32")


class Ins:
    __slots__ = ("text", "mn", "dst", "src", "kind", "passes", "srcc", "states", "wide_store_data")

    def __init__(self, text):
        self.text = text
        body = text.split(";")[0].strip()
        parts = body.split(None, 1)
        self.mn = mn = parts[0]
        rest = parts[1] if len(parts) > 1 else ""
        ops = [o.strip() for o in rest.split(",")] if rest else []
        ops = [o.split()[0] if o else o for o in ops]
        mods = rest
        self.dst, self.src, self.srcc = [], [], []
        self.passes = 0
        self.states = 1
        self.wide_store_data = []
        R = regs_of
        if mn == "s_nop":
            self.kind = "nop"
            self.states = int(ops[0], 0) + 1
        elif mn.startswith("v_mfma"):
            self.kind = "mfma"
            self.dst = R(ops[0])
            self.src = R(ops[1]) + R(ops[2])
            self.srcc = R(ops[3])
            self.passes = 8 if "32x32x16" in mn else 4
        elif mn.startswith("v_"):
            self.kind = "trans" if mn.split("_e32")[0] in TRANS else "valu"
            if mn.startswith("v_cmp"):
                self.dst = R(ops[0])
                self.src = sum((R(o) for o in ops[1:]), [])
                if mn.startswith("v_cmpx"):
                    self.dst += [("x", "exec")]
            elif "permlane" in mn and "swap" in mn:
                self.dst = R(ops[0]) + R(ops[1])
                self.src = R(ops[0]) + R(ops[1])
            elif mn.startswith(("v_add_co", "v_sub_co", "v_addc_co", "v_subb_co")):
                self.dst = R(ops[0]) + R(ops[1])
                self.src = sum((R(o) for o in ops[2:]), [])
            else:
                self.dst = R(ops[0])
                self.src = sum((R(o) for o in ops[1:]), [])
                if mn.startswith(("v_fmac", "v_dot2c", "v_writelane")) or "dpp" in mn:
                    self.src += R(ops[0])
        elif mn.startswith(("buffer_", "global_")):
            self.kind = "vmem"
            if mn in ("buffer_wbl2", "buffer_inv"):
                pass
            elif " lds" in (" " + mods + " ").replace(",", " ") or mn.startswith("global_load_lds"):
                self.src = sum((R(o) for o in ops), []) + [("s", "m0")]
                self.kind = "vmem_lds"
            elif "load" in mn:
                self.dst = R(ops[0])
                self.src = sum((R(o) for o in ops[1:]), [])
                if "d16" in mn:
                    self.src += R(ops[0])
            elif "atomic" in mn and " sc0" in " " + mods:
                if mn.startswith("global"):
                    self.dst = R(ops[0])
                    self.src = sum((R(o) for o in ops[1:]), [])
                else:
                    self.dst = R(ops[0])
                    self.src = sum((R(o) for o in ops), [])
            else:
                self.src = sum((R(o) for o in ops), [])
                if "x4" in mn or "x3" in mn:
                    self.wide_store_data = R(ops[0]) if mn.startswith("buffer") else R(ops[1])
        elif mn.startswith("ds_"):
            self.kind = "ds"
            if "read" in mn or "permute" in mn or "swizzle" in mn or "rtn" in mn:
                self.dst = R(ops[0])
                self.src = sum((R(o) for o in ops[1:]), [])
            else:
                self.src = sum((R(o) for o in ops), [])
        elif mn.startswith("s_"):
            self.kind = "salu"
            if mn.startswith(("s_load", "s_memtime", "s_memrealtime", "s_buffer_load")):
                self.kind = "smem"
                self.dst = R(ops[0])
                self.src = sum((R(o) for o in ops[1:]), [])
            elif mn.startswith(("s_cmp", "s_waitcnt", "s_barrier", "s_branch", "s_cbranch", "s_endpgm", "s_sleep", "s_setprio", "s_bitcmp")):
                self.src = sum((R(o) for o in ops), [])
            else:
                self.dst = R(ops[0])
                self.src = sum((R(o) for o in ops[1:]), [])
                if "saveexec" in mn:
                    self.dst += [("x", "exec")]
        else:
            raise ValueError("unknown instr " + text)


def required_gap(p, c):
    need = 0
    pd = set(p.dst)
    cs = set(c.src)
    cd = set(c.dst)
    cc = set(c.srcc)
    isv = p.kind in ("valu", "trans")
    if isv:
        vd = {r for r in pd if r[0] in "va"}
        sd = {r for r in pd if r[0] == "s"}
        if c.kind == "mfma" and (vd & (cs | cc)):
            need = max(need, 2)
        if c.kind == "mfma" and ("x", "exec") in pd:
            need = max(need, 4)
        if c.kind in ("vmem", "vmem_lds") and (sd & cs):
            need = max(need, 5)
        if c.kind in ("valu", "trans"):
            if sd & cs:
                need = max(need, 4 if c.mn.startswith(("v_readlane", "v_writelane")) else 2)
            if c.mn.startswith(("v_readlane", "v_readfirstlane")) and (vd & cs):
                need = max(need, 1)
            if ("permlane" in c.mn or "dpp" in c.mn) and (vd & cs):
                need = max(need, 2)
            if "dpp" in c.mn and ("x", "exec") in pd:
                need = max(need, 5)
            if ("x", "exec") in pd and c.mn.startswith(("v_readlane", "v_readfirstlane", "v_writelane")) or (
                ("x", "exec") in pd and "permlane" in c.mn
            ):
                need = max(need, 4)
            if p.kind == "trans" and c.kind == "valu" and (vd & cs):
                need = max(need, 1)
            if p.kind == "trans" and c.kind == "trans" and (vd & cs):
                need = max(need, 1)
        if c.kind == "salu" and (sd & cs):
            need = max(need, 1)
        if p.kind == "trans" and c.kind in ("vmem", "ds", "vmem_lds") and (vd & cs):
            need = max(need, 1)
    if p.mn.startswith("v_dot"):
        vd = {r for r in pd if r[0] in "va"}
        if c.mn == p.mn:
            ab = set(sum((regs_of(o.strip().split()[0]) for o in c.text.split(None, 1)[1].split(",")[1:3]), []))
            if vd & ab:
                need = max(need, 3)
        elif vd & (cs | cd | cc):
            need = max(need, 3)
    if p.kind == "salu":
        if ("s", "m0") in pd and c.kind == "vmem_lds":
            need = max(need, 1)
    if p.kind == "mfma":
        big = 12 if p.passes == 8 else 8
        if c.kind == "mfma":
            if pd & cs:
                need = max(need, big)
            if pd & cc:
                if not (list(p.dst) == list(c.srcc) and p.passes == c.passes):
                    need = max(need, 10 if p.passes == 8 else 6)
            elif pd & cd:
                need = max(need, 10 if p.passes == 8 else 6)
        elif c.kind in ("valu", "trans", "vmem", "ds", "vmem_lds"):
            if pd & (cs | cd):
                need = max(need, big)
            if c.kind in ("valu", "trans") and (set(p.srcc) & cd):
                need = max(need, 7 if p.passes == 8 else 3)
    if p.kind == "vmem" and p.wide_store_data:
        if set(p.wide_store_data) & cd:
            need = max(need, 2 if c.kind in ("valu", "trans", "mfma") else 1)
    return need


class Asm:
    def __init__(self):
        self.out = []
        self.hist = []
        self.vm = []
        self.lg = []
        self.nlabel = 0

    def raw(self, s):
        self.out.append(s)

    def label(self, name):
        self.out.append(name + ":")

    def newlabel(self, p="L"):
        self.nlabel += 1
        return f"{p}_{self.nlabel}"

    def _pad(self, ins):
        dist = 0
        need = 0
        for p in reversed(self.hist):
            g = required_gap(p, ins)
            if g > dist:
                need = max(need, g - dist)
            dist += p.states
            if dist >= 20:
                break
        while need > 0:
            n = min(need, 16)
            nop = Ins(f"s_nop {n-1}")
            self.out.append(nop)
            self.hist.append(nop)
            need -= n

    def __call__(self, text, tag=None):
        for line in text.split("\n"):
            line = line.strip()
            if not line:
                continue
            ins = Ins(line)
            self._pad(ins)
            self.out.append(ins)
            self.hist.append(ins)
            if len(self.hist) > 40:
                self.hist = self.hist[-30:]
            if ins.kind in ("vmem", "vmem_lds"):
                self.vm.append(tag)
            elif ins.kind == "ds":
                self.lg.append(tag)
            elif ins.kind == "smem":
                self.lg.append("__smem__")
            elif ins.mn == "s_waitcnt":
                m = re.search(r"vmcnt\((\d+)\)", line)
                if m:
                    n = int(m.group(1))
                    self.vm = self.vm[len(self.vm) - n:] if n < len(self.vm) else self.vm
                    if n == 0:
                        self.vm = []
                m = re.search(r"lgkmcnt\((\d+)\)", line)
                if m:
                    n = int(m.group(1))
                    self.lg = self.lg[len(self.lg) - n:] if n < len(self.lg) else self.lg
                    if n == 0:
                        self.lg = []

    def _count_after(self, q, tag):
        idx = [i for i, t in enumerate(q) if t == tag or (isinstance(tag, (list, set)) and t in tag)]
        if not idx:
            return None
        return len(q) - 1 - idx[-1]

    def wait_vm(self, tag, force=False):
        n = self._count_after(self.vm, tag)
        if n is None:
            return
        assert n <= 63, f"vmcnt {n} too large"
        self(f"s_waitcnt vmcnt({n})")

    def wait_lg(self, tag):
        n = self._count_after(self.lg, tag)
        if n is None:
            return
        if "__smem__" in self.lg:
            n = 0
        n = min(n, 15)
        self(f"s_waitcnt lgkmcnt({n})")

    def text(self):
        L = []
        for o in self.out:
            L.append(o if isinstance(o, str) else "  " + o.text)
        return "\n".join(L) + "\n"

    def check_backedge(self, label):
        idx = None
        for i, o in enumerate(self.out):
            if isinstance(o, str) and o == label + ":":
                idx = i
        assert idx is not None
        head = [o for o in self.out[idx:] if not isinstance(o, str)][:24]
        tail = [o for o in self.out if not isinstance(o, str)][-24:]
        for hi, c in enumerate(head):
            dist = sum(x.states for x in head[:hi])
            for p in reversed(tail):
                g = required_gap(p, c)
                if g > dist:
                    raise AssertionError(f"back-edge hazard: {p.text} -> {c.text} need {g} have {dist}")
                dist += p.states
                if dist >= 20:
                    break


def kernel_header(name):
    return f".globl {name}\n.p2align 8\n.type {name},@function\n{name}:"


def kernel_desc(name, vgpr, agpr, sgpr=102):
    acc_off = (vgpr + 3) // 4 * 4
    nfv = acc_off + agpr if agpr else vgpr
    return (
        f".p2align 6\n.amdhsa_kernel {name}\n  .amdhsa_next_free_vgpr {nfv}\n  .amdhsa_next_free_sgpr {sgpr}\n"
        f"  .amdhsa_accum_offset {acc_off}\n  .amdhsa_group_segment_fixed_size 0\n  .amdhsa_kernarg_size 80\n"
        "  .amdhsa_user_sgpr_count 2\n  .amdhsa_user_sgpr_kernarg_segment_ptr 1\n  .amdhsa_system_sgpr_workgroup_id_x 1\n"
        "  .amdhsa_float_denorm_mode_32 3\n"
        ".end_amdhsa_kernel"
    )


def loop_checked(a, body, step=2):
    n0 = len(a.out)
    body(a, 0)
    w1 = [o for o in a.out[n0:] if not isinstance(o, str) and o.mn == "s_waitcnt"]
    b = Asm()
    b.vm = list(a.vm)
    b.lg = list(a.lg)
    b.hist = list(a.hist)
    for it in (1, 2):
        n1 = len(b.out)
        body(b, it * step)
        w2 = [o.text for o in b.out[n1:] if not isinstance(o, str) and o.mn == "s_waitcnt"]
        assert len(w1) == len(w2), (len(w1), len(w2))
        for x, y in zip(w1, w2):
            for key in ("vmcnt", "lgkmcnt"):
                mx = re.search(key + r"\((\d+)\)", x.text)
                my = re.search(key + r"\((\d+)\)", y)
                assert (mx is None) == (my is None), (x.text, y)
                if mx and int(mx.group(1)) > int(my.group(1)):
                    x.text = x.text.replace(mx.group(0), my.group(0))
```

```python
from asmlib import *
from layout import *
from gen_p0 import prologue, mksrd, f2u, sdivmod
from gen_k1 import entries, rnd, setexec, lanemask, stats_combine, LOG2E
import math

SLOT = 36 * KB
B1_CS = 4 * SLOT
B1_LDS = B1_CS + 12 * KB
NWB = 6
ACC = (16, 48)
WB = 80
TMP = 108
CST = 136
STD = 144
MR = 216
GC = -2.0 * math.sqrt(2.0 / math.pi) * LOG2E


def xreg(ks, tl):
    if ks == 36:
        r = MR + tl * 4
        return f"v[{r}:{r+3}]"
    f = ks * 2 + tl
    if f < 64:
        return f"a[{f*4}:{f*4+3}]"
    r = 224 + (f - 64) * 4
    return f"v[{r}:{r+3}]"


def epilogue_list(X):
    L = []
    for tl in range(2):
        C0, C1, Dd = (f"v{CST+tl*3+i}" for i in range(3))
        for p in range(4):
            ga, gb = X + tl * 16 + 2 * p, X + tl * 16 + 2 * p + 1
            ua, ub = ga + 8, gb + 8
            ta, tb = TMP + (p & 1) * 2, TMP + (p & 1) * 2 + 1
            L += [
                f"v_mul_f32 v{ta}, v{ga}, v{ga}",
                f"v_mul_f32 v{tb}, v{gb}, v{gb}",
                f"v_fma_f32 v{ta}, v{ta}, {C1}, {C0}",
                f"v_fma_f32 v{tb}, v{tb}, {C1}, {C0}",
                f"v_mul_f32 v{ta}, v{ta}, v{ga}",
                f"v_mul_f32 v{tb}, v{tb}, v{gb}",
                f"v_exp_f32 v{ta}, v{ta}",
                f"v_exp_f32 v{tb}, v{tb}",
                f"v_mul_f32 v{ga}, v{ga}, v{ua}",
                f"v_mul_f32 v{gb}, v{gb}, v{ub}",
                f"v_fma_f32 v{ta}, v{ta}, {Dd}, {Dd}",
                f"v_fma_f32 v{tb}, v{tb}, {Dd}, {Dd}",
                f"v_rcp_f32 v{ta}, v{ta}",
                f"v_rcp_f32 v{tb}, v{tb}",
                f"v_mul_f32 v{ga}, v{ga}, v{ta}",
                f"v_mul_f32 v{gb}, v{gb}, v{tb}",
                f"v_cvt_pk_bf16_f32 v{STD+tl*4+p}, v{ga}, v{gb}",
            ]
        L.append((f"buffer_store_dwordx4 v[{STD+tl*4}:{STD+tl*4+3}], v1, s[4:7], s{44+tl} offen sc1", "st"))
        L.append(f"s_add_u32 s{44+tl}, s{44+tl}, 1024")
    return L


def dma_list(tag):
    L = []
    for i in range(9):
        L.append((f"buffer_load_dwordx4 v1, s[4:7], s48 offen offset:{(i&3)*1024} lds", tag))
        if i in (3, 7):
            L.append("s_add_u32 s48, s48, 4096")
            L.append("s_add_u32 m0, m0, 4096")
    return L


def dma_setup(a):
    return [
        "s_cmp_gt_i32 s42, 0\ns_cselect_b32 s48, s40, s49",
        "s_mov_b32 m0, s41",
        f"s_add_u32 s40, s40, {SLOT}",
        "s_sub_u32 s42, s42, 1",
        f"s_add_u32 s41, s41, {SLOT}",
        f"s_cmp_ge_u32 s41, {4*SLOT}\ns_cselect_b32 s47, {4*SLOT}, 0\ns_sub_u32 s41, s41, s47",
    ]


def emit(a, it):
    if isinstance(it, tuple):
        a(it[0], tag=it[1])
    else:
        a(it)


def unit(a, X, fillers, uid, first=False, last=False, pre=None):
    AH = NWB - 1
    for ks in range(37):
        n = ks + AH
        if n == 37 and not last:
            a.wait_vm(("w", uid + 1))
            a("s_barrier")
            a("v_add_u32 v2, s43, v1")
        if n <= 36:
            rd(a, n, uid)
        elif not last:
            rd(a, n - 37, uid + 1)
        if pre:
            pre(ks)
        a.wait_lg((uid, ks))
        w = wbuf(ks)
        for tl in range(2):
            c = X + tl * 16
            cin = f"v[{c}:{c+15}]" if ks else "0"
            a(f"v_mfma_f32_32x32x16_bf16 v[{c}:{c+15}], v[{w}:{w+3}], {xreg(ks, tl)}, {cin}")
            for it in fillers.get(ks * 2 + tl, []):
                emit(a, it)


def wbuf(n):
    return WB + (n % NWB if n < 36 else NWB) * 4


def rd(a, n, uid):
    w = wbuf(n)
    if n < 36:
        a(f"ds_read_b128 v[{w}:{w+3}], v2 offset:{n*1024}", tag=(uid, n))
    else:
        a(f"ds_read_b128 v[{w}:{w+3}], v3", tag=(uid, n))
        a("v_add_u32 v3, 0x400, v3")


def spread(items, g0, g1, fl):
    n = len(items)
    for i, it in enumerate(items):
        g = g0 + (i * (g1 - g0)) // n
        fl.setdefault(g, []).append(it)


def slot_adv():
    return [
        f"s_add_u32 s43, s43, {SLOT}",
        f"s_cmp_ge_u32 s43, {4*SLOT}\ns_cselect_b32 s47, {4*SLOT}, 0\ns_sub_u32 s43, s43, s47",
    ]


def gen_b1(a):
    names = entries(a, "b1", "B1_main")
    prologue(a, 256, "B1_end")
    a("v_lshlrev_b32 v1, 4, v0")
    a("s_and_b32 s36, s2, 7")
    a("s_lshr_b32 s37, s2, 3")
    a("s_and_b32 s38, s36, 1")
    a("s_lshl_b32 s38, s38, 2")
    a("s_and_b32 s39, s37, 3")
    a("s_add_u32 s38, s38, s39")
    a("s_lshr_b32 s39, s36, 1")
    a("s_lshl_b32 s39, s39, 3")
    a("s_lshr_b32 s46, s37, 2")
    a("s_add_u32 s39, s39, s46")
    a(f"s_mul_i32 s40, s39, {9*SLOT}")
    a(f"s_mul_i32 s41, s3, {9*KB}")
    a("s_add_u32 s40, s40, s41")
    a(f"s_add_u32 s40, s40, {WGU}")
    a("s_mov_b32 s42, 9")
    a(f"s_mov_b32 s49, {OOB}")
    for it in dma_setup(a) + dma_list(("w", 0)):
        emit(a, it)
    a(f"s_mul_i32 s46, s39, {9*KB}")
    a(f"s_mul_i32 s47, s3, {3*KB}")
    a("s_add_u32 s46, s46, s47")
    a(f"s_add_u32 s46, s46, {CSGU}")
    a(f"s_add_u32 m0, s47, {B1_CS}")
    for i in range(3):
        a(f"buffer_load_dwordx4 v1, s[4:7], s46 offen offset:{i*1024} lds", tag=("w", 0))
    a("s_lshl_b32 s52, s38, 3")
    a("s_lshl_b32 s53, s3, 1")
    a("s_add_u32 s52, s52, s53")
    a("s_lshl_b32 s46, s52, 11")
    a(f"s_add_u32 s46, s46, {ST1}")
    a("s_add_u32 s46, s46, s50")
    a("v_and_b32 v4, 31, v0")
    a("v_lshlrev_b32 v4, 6, v4")
    SR = 152
    for tl in range(2):
        for i in range(4):
            r = SR + tl * 16 + i * 4
            a(f"buffer_load_dwordx4 v[{r}:{r+3}], v4, s[4:7], s46 offen offset:{tl*2048+i*16}", tag="stat")
    a("s_mul_i32 s54, s52, 36864")
    a(f"s_add_u32 s54, s54, {X1}")
    a("s_add_u32 s54, s54, s50")
    a("s_add_u32 s55, s54, 36864")
    xl = []
    for ks in range(36):
        for tl in range(2):
            xl.append((f"buffer_load_dwordx4 {xreg(ks, tl)}, v1, s[4:7], s{54+tl} offen offset:{(ks&3)*1024}", ("x", ks)))
        if ks & 3 == 3:
            xl.append("s_add_u32 s54, s54, 4096")
            xl.append("s_add_u32 s55, s55, 4096")
    pend = []
    cut = [i for i, it in enumerate(xl) if isinstance(it, tuple) and it[1] == ("x", 26)][0]
    pend = xl[:cut] + dma_setup(a) + dma_list(("w", 1)) + xl[cut:] + dma_setup(a) + dma_list(("w", 2)) + dma_setup(a) + dma_list(("w", 3))

    def issue(nv):
        while pend and nv > 0:
            it = pend.pop(0)
            emit(a, it)
            if isinstance(it, tuple):
                nv -= 1
        while pend and not isinstance(pend[0], tuple):
            emit(a, pend.pop(0))

    issue(62 - len(a.vm))
    a(f"s_mul_i32 s44, s52, {576*512}")
    a(f"s_mul_i32 s46, s39, {9*KB}")
    a("s_add_u32 s44, s44, s46")
    a(f"s_add_u32 s44, s44, {HB}")
    a("s_add_u32 s44, s44, s50")
    a(f"s_add_u32 s45, s44, {576*512}")
    a("v_mov_b32 v2, v1")
    a(f"v_add_u32 v3, {B1_CS}, v1")
    a(f"s_mov_b32 s43, {SLOT}")
    a.wait_vm("stat")
    for tl in range(2):
        stats_combine(a, SR + tl * 16, [80, 64] * 4, "v4", "v5", f"v{MR+tl*4}", "v6")
        for r in range(1, 4):
            a(f"v_mov_b32 v{MR+tl*4+r}, v{MR+tl*4}")
        C0, C1, Dd = (f"v{CST+tl*3+i}" for i in range(3))
        a(f"v_mul_f32 {Dd}, v6, v6")
        a("v_rcp_f32 v6, v6")
        a(f"v_mul_f32 {C0}, {f2u(GC)}, v6")
        a("v_mul_f32 v5, v6, v6")
        a(f"v_mul_f32 v5, {f2u(0.044715)}, v5")
        a(f"v_mul_f32 {C1}, v5, {C0}")
    a("s_barrier")
    for n in range(NWB - 1):
        rd(a, n, 0)

    def pre0(ks):
        if ks < 36:
            assert not any(isinstance(it, tuple) and it[1] == ("x", ks) for it in pend)
            a.wait_vm(("x", ks))
        issue(62 - len(a.vm))

    fl = {}
    spread(slot_adv(), 65, 69, fl)
    unit(a, ACC[0], fl, 0, pre=pre0)
    assert not pend
    a("s_mov_b32 s56, 0")
    a.label("B1_loop")

    def body(a, base):
        for uid in (base + 1, base + 2):
            fl = {}
            spread(epilogue_list(ACC[(uid - 1) & 1]), 3, 62, fl)
            spread(slot_adv() + dma_setup(a) + dma_list(("w", uid + 3)), 65, 74, fl)
            unit(a, ACC[uid & 1], fl, uid)

    loop_checked(a, body)
    a("s_add_u32 s56, s56, 1")
    a("s_cmp_lt_u32 s56, 4")
    a("s_cbranch_scc1 B1_loop")
    a.check_backedge("B1_loop")
    for it in epilogue_list(ACC[0]):
        emit(a, it)
    a.label("B1_end")
    a("s_endpgm")
    return [dict(name=n, grid=256, block=256, lds=B1_LDS, vgpr=256, agpr=256) for n in names]
```

```python
from asmlib import *
from layout import *
from gen_p0 import prologue, mksrd, f2u, sdivmod
from gen_k1 import entries, rnd, setexec, lanemask
from gen_k2 import chan_q
from gen_b1 import dma_list, dma_setup, emit, spread, slot_adv, SLOT

B2_LDS = 4 * SLOT
NWB = 6
WB = 80
SETS = (16, 24)
XSET = 32


def hreg(ks, u):
    f = ks * 2 + u
    if f < 64:
        return f"a[{f*4}:{f*4+3}]"
    r = 224 + (f - 64) * 4
    return f"v[{r}:{r+3}]"


def rd(a, n, cid):
    w = WB + (n % NWB) * 4
    a(f"ds_read_b128 v[{w}:{w+3}], v2 offset:{n*1024}", tag=(cid, n))


def store_list(X):
    L = []
    for u in range(2):
        L.append((f"buffer_store_dwordx4 v[{X+u*4}:{X+u*4+3}], v1, s[4:7], s44 offen offset:{u*1024} sc1", "st"))
    L.append("s_add_u32 s44, s44, 8192")
    return L


def chunk(a, cid, stepinfo, fillers, pre=None):
    AH = NWB - 1
    for n in range(36):
        m = n + AH
        if m == 36:
            a.wait_vm(("w", cid + 1))
            a("s_barrier")
            a("v_add_u32 v2, s43, v1")
        if m < 36:
            rd(a, m, cid)
        else:
            rd(a, m - 36, cid + 1)
        ks, X, first = stepinfo(n)
        if pre:
            pre(ks)
        a.wait_lg((cid, n))
        w = WB + (n % NWB) * 4
        for u in range(2):
            c = X + u * 4
            cin = "0" if first else f"v[{c}:{c+3}]"
            a(f"v_mfma_f32_16x16x32_bf16 v[{c}:{c+3}], v[{w}:{w+3}], {hreg(ks, u)}, {cin}")
            for it in fillers.get(n * 2 + u, []):
                emit(a, it)


def gen_b2(a):
    names = entries(a, "b2", "B2_main")
    prologue(a, 256, "B2_end")
    a("v_lshlrev_b32 v1, 4, v0")
    a("s_and_b32 s36, s2, 7")
    a("s_lshr_b32 s37, s2, 3")
    a("s_and_b32 s38, s36, 1")
    a("s_lshl_b32 s38, s38, 3")
    a("s_and_b32 s39, s37, 7")
    a("s_add_u32 s38, s38, s39")
    a("s_lshr_b32 s39, s37, 3")
    a("s_lshr_b32 s57, s36, 1")
    a("s_lshl_b32 s40, s57, 2")
    a("s_add_u32 s40, s40, s39")
    a(f"s_mul_i32 s40, s40, {9*SLOT}")
    a(f"s_mul_i32 s41, s3, {9*KB}")
    a("s_add_u32 s40, s40, s41")
    a(f"s_add_u32 s40, s40, {WD}")
    a("s_mov_b32 s42, 9")
    a(f"s_mov_b32 s49, {OOB}")
    a("s_lshl_b32 s52, s38, 2")
    a("s_add_u32 s52, s52, s3")
    a(f"s_mul_i32 s54, s52, {576*512}")
    a(f"s_mul_i32 s46, s57, {144*512}")
    a("s_add_u32 s54, s54, s46")
    a(f"s_add_u32 s54, s54, {HB}")
    a("s_add_u32 s54, s54, s50")
    a("v_and_b32 v4, 15, v0")
    a("v_lshrrev_b32 v5, 4, v0")
    a("v_lshlrev_b32 v4, 4, v4")
    a("v_lshl_add_u32 v4, v5, 9, v4")
    pend = []
    per = 36 // UA
    for c in range(4):
        pend += dma_setup(a) + dma_list(("w", c))
        if c < UA:
            for ks in range(c * per, (c + 1) * per):
                for u in range(2):
                    pend.append((f"buffer_load_dwordx4 {hreg(ks, u)}, v4, s[4:7], s54 offen offset:{(ks&1)*2048+u*256}", ("x", ks)))
                if ks & 1:
                    pend.append("s_add_u32 s54, s54, 4096")

    def issue(nv):
        while pend and nv > 0:
            it = pend.pop(0)
            emit(a, it)
            if isinstance(it, tuple):
                nv -= 1
        while pend and not isinstance(pend[0], tuple):
            emit(a, pend.pop(0))

    issue(62)
    a("s_lshl_b32 s44, s57, 4")
    a("s_add_u32 s44, s44, s38")
    a("s_lshl_b32 s44, s44, 2")
    a("s_add_u32 s44, s44, s39")
    a(f"s_mul_i32 s44, s44, {9*8192}")
    a("s_lshl_b32 s46, s3, 11")
    a("s_add_u32 s44, s44, s46")
    a(f"s_add_u32 s44, s44, {PART}")
    a("s_add_u32 s44, s44, s50")
    a("v_mov_b32 v2, v1")
    a(f"s_mov_b32 s43, {SLOT}")
    a.wait_vm(("w", 0))
    a("s_barrier")
    for n in range(NWB - 1):
        rd(a, n, 0)

    def accA(unit):
        return SETS[0] if unit == UA - 1 else XSET + unit * 8

    def pre(ks):
        assert not any(isinstance(it, tuple) and it[1] == ("x", ks) for it in pend)
        a.wait_vm(("x", ks))
        issue(62 - len(a.vm))

    for c in range(UA):
        fl2 = {}
        spread(slot_adv(), 63, 67, fl2)

        def info(n, c=c):
            pos = c * 36 + n
            if n == 31 and c >= 1:
                pend.extend(dma_setup(a) + dma_list(("w", c + 3)))
            return pos // UA, accA(pos % UA), pos // UA == 0

        chunk(a, c, info, fl2, pre=pre)
    issue(62 - len(a.vm))
    assert not pend
    for unit in range(UA - 1):
        for it in store_list(accA(unit)):
            emit(a, it)
    a("s_mov_b32 s56, 0")
    a.label("B2_loop")

    def body(a, base):
        for k in range(2):
            cid = UA + base + k
            fl = {}
            spread(store_list(SETS[k]), 6, 12, fl)
            spread(slot_adv() + dma_setup(a) + dma_list(("w", cid + 3)), 63, 72, fl)
            X = SETS[1 - k]
            chunk(a, cid, lambda n: (n, X, n == 0), fl)

    loop_checked(a, body)
    a("s_add_u32 s56, s56, 1")
    a(f"s_cmp_lt_u32 s56, {(9-UA)//2}")
    a("s_cbranch_scc1 B2_loop")
    a.check_backedge("B2_loop")
    for it in store_list(SETS[0]):
        emit(a, it)
    a.label("B2_end")
    a("s_endpgm")
    return [dict(name=n, grid=256, block=256, lds=B2_LDS, vgpr=256, agpr=256) for n in names]


def gen_r(a):
    names = entries(a, "r", "R_main")
    prologue(a, 128, "R_end")
    a("v_lshlrev_b32 v1, 4, v0")
    a("v_and_b32 v5, 15, v0")
    a("v_lshrrev_b32 v6, 4, v0")
    a("s_lshr_b32 s38, s2, 3")
    a("s_and_b32 s39, s2, 7")
    a("s_lshl_b32 s40, s38, 2")
    a("s_add_u32 s40, s40, s3")
    a(f"s_mul_i32 s40, s40, {9*8192}")
    a("s_lshl_b32 s41, s39, 10")
    a("s_add_u32 s40, s40, s41")
    a(f"s_add_u32 s40, s40, {PART}")
    a("s_add_u32 s40, s40, s50")
    PR = 32
    for unit in range(9):
        for s in range(4):
            r = PR + (unit * 4 + s) * 4
            a(f"s_add_u32 s41, s40, {s*64*9*8192 + unit*8192}")
            a(f"buffer_load_dwordx4 v[{r}:{r+3}], v1, s[4:7], s41 offen", tag=("p", unit))
    a("s_lshr_b32 s42, s2, 1")
    a("s_mul_i32 s42, s42, 36864")
    a("s_mul_i32 s43, s3, 9216")
    a("s_add_u32 s42, s42, s43")
    a("s_and_b32 s43, s2, 1")
    a("s_lshl_b32 s43, s43, 8")
    a("s_add_u32 s42, s42, s43")
    a("v_lshrrev_b32 v7, 1, v6")
    a("v_lshlrev_b32 v7, 9, v7")
    a("v_lshl_add_u32 v7, v5, 4, v7")
    a("v_and_b32 v8, 1, v6")
    a("v_lshl_add_u32 v7, v8, 3, v7")
    a(f"s_add_u32 s43, s42, {X1}")
    a("s_add_u32 s43, s43, s50")
    RES = 12
    for unit in range(9):
        a(f"buffer_load_dwordx2 v[{RES+2*unit}:{RES+2*unit+1}], v7, s[4:7], s43 offen offset:{(unit&3)*1024}", tag="res")
        if unit & 3 == 3:
            a("s_add_u32 s43, s43, 4096")
    a("s_cmp_eq_u32 s51, 0")
    a("s_cselect_b32 s8, s34, s30")
    a("s_cselect_b32 s9, s35, s31")
    a(f"s_cselect_b32 s10, s6, {XBYTES}")
    a("s_and_b32 s9, s9, 0xffff")
    a("s_mov_b32 s11, 0x20000")
    a(f"s_add_u32 s44, s42, {L0+LSTRIDE+XA}")
    a(f"s_mul_i32 s46, s2, {16*1152}")
    a("s_mul_i32 s47, s3, 288")
    a("s_add_u32 s46, s46, s47")
    a("s_cmp_eq_u32 s51, 0")
    a("s_cselect_b32 s44, s44, s46")
    a("s_cselect_b32 s45, 1024, 32")
    a("s_cselect_b64 s[52:53], -1, 0")
    a("v_mul_u32_u24 v9, 1152, v5")
    a("v_lshl_add_u32 v9, v6, 3, v9")
    a("v_cndmask_b32 v9, v9, v7, s[52:53]")
    a.wait_vm("res")
    XV = 176
    for unit in range(9):
        b = PR + unit * 16
        for r in range(4):
            a(f"v_add_f32 v{b+r}, v{b+r}, v{b+4+r}")
            a(f"v_add_f32 v{b+8+r}, v{b+8+r}, v{b+12+r}")
        for r in range(4):
            a(f"v_add_f32 v{b+r}, v{b+r}, v{b+8+r}")
        a(f"v_cvt_pk_bf16_f32 v{b+4}, v{b}, v{b+1}")
        a(f"v_cvt_pk_bf16_f32 v{b+5}, v{b+2}, v{b+3}")
        for hf in range(2):
            a(f"v_lshlrev_b32 v{b+2*hf}, 16, v{b+4+hf}")
            a(f"v_and_b32 v{b+2*hf+1}, 0xffff0000, v{b+4+hf}")
            a(f"v_lshlrev_b32 v{b+8+2*hf}, 16, v{RES+2*unit+hf}")
            a(f"v_and_b32 v{b+8+2*hf+1}, 0xffff0000, v{RES+2*unit+hf}")
        for r in range(4):
            a(f"v_add_f32 v{b+r}, v{b+r}, v{b+8+r}")
        a(f"v_cvt_pk_bf16_f32 v{b+4}, v{b}, v{b+1}")
        a(f"v_cvt_pk_bf16_f32 v{b+5}, v{b+2}, v{b+3}")
        a(f"buffer_store_dwordx2 v[{b+4}:{b+5}], v9, s[8:11], s44 offen")
        a("s_add_u32 s44, s44, s45")
        for hf in range(2):
            a(f"v_lshlrev_b32 v{XV+unit*4+2*hf}, 16, v{b+4+hf}")
            a(f"v_and_b32 v{XV+unit*4+2*hf+1}, 0xffff0000, v{b+4+hf}")
    a("s_cmp_lg_u32 s51, 0")
    a("s_cbranch_scc1 R_end")
    a(f"v_add_f32 v10, v{XV}, v{XV+1}")
    a(f"v_add_f32 v11, v{XV+2}, v{XV+3}")
    for r in range(4, 36, 2):
        a(f"v_add_f32 v10, v10, v{XV+r}")
        a(f"v_add_f32 v11, v11, v{XV+r+1}")
    a("v_add_f32 v10, v10, v11")
    a(f"v_mul_f32 v10, {f2u(1/36)}, v10")
    a("v_mov_b32 v11, 0")
    for r in range(36):
        a(f"v_sub_f32 v{XV+r}, v{XV+r}, v10")
        a(f"v_fmac_f32 v11, v{XV+r}, v{XV+r}")
    a(f"s_mov_b32 s48, {f2u(18.0)}")
    a(f"s_mov_b32 s49, {f2u(36.0)}")
    chan_q(a, "v10", "v11", "v2", "v3", ["s48", "s49"])
    a("s_lshl_b32 s46, s2, 9")
    a("s_lshl_b32 s47, s3, 3")
    a("s_add_u32 s46, s46, s47")
    a(f"s_add_u32 s46, s46, {L0+LSTRIDE+STA}")
    a("v_lshlrev_b32 v8, 5, v5")
    setexec(a, 0xFFFF)
    a("buffer_store_dwordx2 v[10:11], v8, s[4:7], s46 offen")
    a.label("R_end")
    a("s_endpgm")
    return [dict(name=n, grid=128, block=256, lds=0, vgpr=216, agpr=0) for n in names]
```

```python
from asmlib import *
from layout import *
from gen_p0 import prologue, mksrd, f2u, sdivmod
import math

LOG2E = math.log2(math.e)


def entries(a, base, common):
    names = []
    for l in range(2):
        nm = f"{base}{'ab'[l]}_kernel"
        a.raw(kernel_header(nm))
        a(f"s_mov_b32 s50, {L0 + l*LSTRIDE}")
        a(f"s_mov_b32 s51, {l}")
        if l == 0:
            a(f"s_branch {common}")
        names.append(nm)
    a.label(common)
    a.hist = []
    a.vm = []
    a.lg = []
    return names


def rnd(a, dst, src):
    a(f"v_cvt_pk_bf16_f32 {dst}, {src}, {src}")
    a(f"v_lshlrev_b32 {dst}, 16, {dst}")


def stats_combine(a, r0, counts, t0, t1, negm_pk, s_out):
    n = len(counts)
    N = sum(counts)
    assert N == D
    a(f"v_mul_f32 {t0}, {f2u(counts[0]/N)}, v{r0}")
    for j in range(1, n):
        a(f"v_fmamk_f32 {t0}, v{r0+2*j}, {f2u(counts[j]/N)}, {t0}")
    a(f"v_mov_b32 {t1}, v{r0+1}")
    for j in range(1, n):
        a(f"v_add_f32 {t1}, {t1}, v{r0+2*j+1}")
    for j in range(n):
        a(f"v_sub_f32 v{r0+2*j}, v{r0+2*j}, {t0}")
        a(f"v_mul_f32 v{r0+2*j}, v{r0+2*j}, v{r0+2*j}")
        a(f"v_fmamk_f32 {t1}, v{r0+2*j}, {f2u(float(counts[j]))}, {t1}")
    a(f"v_mul_f32 {t1}, {f2u(1.0/N)}, {t1}")
    a(f"v_cvt_pk_bf16_f32 {negm_pk}, -{t0}, -{t0}")
    rnd(a, t1, t1)
    a(f"v_add_f32 {t1}, {f2u(1e-5)}, {t1}")
    rnd(a, t1, t1)
    a(f"v_sqrt_f32 {t1}, {t1}")
    rnd(a, s_out, t1)


def phi_pair(a, x0, x1, dst, t0, t1):
    a(f"v_cvt_pk_bf16_f32 {t0}, {x0}, {x1}")
    a(f"v_lshlrev_b32 {x0}, 16, {t0}")
    a(f"v_and_b32 {x1}, 0xffff0000, {t0}")
    a(f"v_mul_f32 {t0}, {f2u(LOG2E)}, {x0}")
    a(f"v_mul_f32 {t1}, {f2u(LOG2E)}, {x1}")
    a(f"v_exp_f32 {t0}, {t0}")
    a(f"v_exp_f32 {t1}, {t1}")
    a(f"v_cmp_lt_f32 vcc, 0, {x0}")
    a(f"v_cmp_lt_f32 s[52:53], 0, {x1}")
    a(f"v_add_f32 {x0}, 1.0, {x0}")
    a(f"v_add_f32 {x1}, 1.0, {x1}")
    a(f"v_cndmask_b32 {x0}, {t0}, {x0}, vcc")
    a(f"v_cndmask_b32 {x1}, {t1}, {x1}, s[52:53]")
    a(f"v_cvt_pk_bf16_f32 {t0}, {x0}, {x1}")
    a(f"v_lshlrev_b32 {x0}, 16, {t0}")
    a(f"v_and_b32 {x1}, 0xffff0000, {t0}")
    a(f"v_add_f32 {x0}, {f2u(1e-6)}, {x0}")
    a(f"v_add_f32 {x1}, {f2u(1e-6)}, {x1}")
    a(f"v_cvt_pk_bf16_f32 {dst}, {x0}, {x1}")


def setexec(a, mask):
    a(f"s_mov_b32 exec_lo, 0x{mask & 0xffffffff:x}")
    a(f"s_mov_b32 exec_hi, 0x{mask >> 32:x}")


def lanemask(fn):
    m = 0
    for l in range(64):
        if fn(l & 15, l >> 4):
            m |= 1 << l
    return m


K1_W = 0
K1_RS = 136 * KB
K1_IMG = K1_RS + 1024
K1_LDS = K1_IMG + 4096


def gen_k1(a):
    names = entries(a, "k1", "K1_main")
    prologue(a, 256, "K1_end")
    XR, MR, AC, WB = 16, 160, 168, 208
    a("v_and_b32 v5, 15, v0")
    a("v_lshrrev_b32 v6, 4, v0")
    a("s_and_b32 s36, s2, 7")
    a("s_lshr_b32 s37, s2, 3")
    a("s_and_b32 s38, s36, 3")
    a("s_lshl_b32 s38, s38, 2")
    a("s_and_b32 s39, s37, 3")
    a("s_add_u32 s38, s38, s39")
    a("s_lshr_b32 s39, s36, 2")
    a("s_lshl_b32 s39, s39, 3")
    a("s_lshr_b32 s40, s37, 2")
    a("s_add_u32 s39, s39, s40")
    a("s_and_b32 s40, s3, 3")
    a("s_lshl_b32 s41, s38, 2")
    a("s_add_u32 s41, s41, s40")
    a("s_lshl_b32 s42, s41, 10")
    a(f"s_add_u32 s42, s42, {STA}")
    a("s_add_u32 s42, s42, s50")
    a("v_lshlrev_b32 v7, 5, v5")
    for u in range(2):
        for h in range(2):
            a(f"buffer_load_dwordx4 v[{WB+u*8+h*4}:{WB+u*8+h*4+3}], v7, s[4:7], s42 offen offset:{u*512+h*16}", tag="stat")
    a(f"s_mul_i32 s43, s39, {133*KB}")
    a(f"s_add_u32 s43, s43, {WQKV}")
    a("s_lshl_b32 s44, s3, 10")
    a("v_lshl_add_u32 v8, v0, 4, s44")
    a("s_mov_b32 m0, s44")
    a("s_mul_i32 s45, s41, 36864")
    a(f"s_add_u32 s45, s45, {XA}")
    a("s_add_u32 s45, s45, s50")
    a("v_lshlrev_b32 v9, 4, v5")
    a("v_lshl_add_u32 v9, v6, 9, v9")
    chunks = [(0, 5), (5, 10), (10, 15), (15, 19)]
    rounds_done = 0
    for ci, (k0, k1) in enumerate(chunks):
        need = (k1 * 7 + 7) // 8
        while rounds_done < need:
            a(f"buffer_load_dwordx4 v8, s[4:7], s43 offen lds", tag=("w", ci))
            rounds_done += 1
            if rounds_done < 17:
                a("s_add_u32 s43, s43, 8192")
                a("s_add_u32 m0, m0, 8192")
        for ks in range(k0, min(k1, 18)):
            for u in range(2):
                r = XR + ks * 8 + u * 4
                a(f"buffer_load_dwordx4 v[{r}:{r+3}], v9, s[4:7], s45 offen offset:{(ks&1)*2048+u*256}", tag=("x", ks))
            if ks & 1:
                a("s_add_u32 s45, s45, 4096")
    a("v_mov_b32 v10, 0")
    a("v_mov_b32 v11, 0")
    a("s_lshl_b32 s46, s3, 9")
    a(f"s_add_u32 s46, s46, {K1_IMG}")
    a("v_lshl_add_u32 v12, v0, 3, s46")
    a("ds_write_b64 v12, v[10:11]")
    a.wait_vm("stat")
    for u in range(2):
        stats_combine(a, WB + u * 8, [144] * 4, "v10", "v11", f"v{MR+u*4}", f"v{12+u}")
        a(f"v_rcp_f32 v{12+u}, v{12+u}")
        for r in range(1, 4):
            a(f"v_mov_b32 v{MR+u*4+r}, v{MR+u*4}")
    a("s_lshl_b32 s46, s3, 7")
    a(f"s_add_u32 s46, s46, {K1_RS}")
    a("v_lshl_add_u32 v10, v5, 2, s46")
    a("ds_write_b32 v10, v12")
    a("ds_write_b32 v10, v13 offset:64")
    a("v_lshl_add_u32 v10, v6, 4, s46")
    a("s_waitcnt lgkmcnt(0)")
    a("ds_read_b128 v[248:251], v10")
    a("ds_read_b128 v[252:255], v10 offset:64")
    a("v_lshlrev_b32 v14, 4, v0")
    a("s_cmp_ge_u32 s3, 4")
    a("s_cbranch_scc1 K1_q")
    vm_save = list(a.vm)

    def mainloop(tiles, kv):
        nt = len(tiles)

        def reads(ks):
            st = ks & 1
            for ti, t in enumerate(tiles):
                off = (ks * 7 + t) * 1024
                base = "v14"
                if off >= 65536:
                    base = "v15" if off < 131072 else "v4"
                    off &= 65535
                r = WB + st * 20 + ti * 4
                a(f"ds_read_b128 v[{r}:{r+3}], {base} offset:{off}", tag=("wr", ks, ti))
        a("v_add_u32 v15, 0x10000, v14")
        a("v_add_u32 v4, 0x20000, v14")
        for ci, (k0, k1) in enumerate(chunks):
            a.wait_vm(("w", ci))
            if ci == 0:
                a("s_waitcnt lgkmcnt(0)")
            a("s_barrier")
            reads(k0)
            for ks in range(k0, k1):
                if ks + 1 < k1:
                    reads(ks + 1)
                if ks < 18:
                    a.wait_vm(("x", ks))
                st = ks & 1
                for ti, t in enumerate(tiles):
                    a.wait_lg(("wr", ks, ti))
                    w = WB + st * 20 + ti * 4
                    for u in range(2):
                        x = (XR + ks * 8 + u * 4) if ks < 18 else MR + u * 4
                        c = AC + ti * 8 + u * 4
                        cin = f"v[{c}:{c+3}]" if ks else "0"
                        if kv:
                            a(f"v_mfma_f32_16x16x32_bf16 v[{c}:{c+3}], v[{x}:{x+3}], v[{w}:{w+3}], {cin}")
                        else:
                            a(f"v_mfma_f32_16x16x32_bf16 v[{c}:{c+3}], v[{w}:{w+3}], v[{x}:{x+3}], {cin}")

    mainloop([0, 1, 2, 3, 4], True)
    OP = 16
    for ti in range(5):
        for u in range(2):
            for r in range(4):
                c = AC + ti * 8 + u * 4 + r
                a(f"v_mul_f32 v{c}, v{c}, v{248+u*4+r}")
    for ti in (2, 3, 4):
        dst = OP + ti * 4 if ti < 4 else 40
        for u in range(2):
            for h in range(2):
                c = AC + ti * 8 + u * 4 + h * 2
                a(f"v_cvt_pk_bf16_f32 v{dst+u*2+h}, v{c}, v{c+1}")
    for ti in (0, 1, 4):
        for u in range(2):
            for h in range(2):
                c = AC + ti * 8 + u * 4 + h * 2
                phi_pair(a, f"v{c}", f"v{c+1}", f"v{OP+ti*4+u*2+h}", "v10", "v11")
    a("v_mov_b32 v10, 0x3f803f80")
    m_phi = lanemask(lambda i, q: i < 4)
    m_one = lanemask(lambda i, q: i in (6, 10))
    a(f"s_mov_b32 s52, 0x{m_phi & 0xffffffff:x}")
    a(f"s_mov_b32 s53, 0x{m_phi >> 32:x}")
    a(f"s_mov_b32 s54, 0x{m_one & 0xffffffff:x}")
    a(f"s_mov_b32 s55, 0x{m_one >> 32:x}")
    for r in range(4):
        a(f"v_cndmask_b32 v{OP+16+r}, v{40+r}, v{OP+16+r}, s[52:53]")
        a(f"v_cndmask_b32 v{OP+16+r}, v{OP+16+r}, v10, s[54:55]")
    Ka, Kb, Va, Vb, X = (f"v[{OP+t*4}:{OP+t*4+3}]" for t in range(5))
    pairs = [(Va, Ka), (Vb, Kb), (Va, X), (Vb, X), (X, Ka), (X, Kb), (X, X)]
    KVR = 48
    for n, (A_, B_) in enumerate(pairs):
        a(f"v_mfma_f32_16x16x32_bf16 v[{KVR+n*4}:{KVR+n*4+3}], {A_}, {B_}, 0")
    a(f"v_mul_u32_u24 v10, {4*KVROW}, v6")
    a("v_lshl_add_u32 v10, v5, 2, v10")
    a(f"v_add_u32 v10, {K1_IMG}, v10")
    a("v_lshlrev_b32 v11, 2, v5")
    a(f"v_add_u32 v11, {K1_IMG + 16*KVROW}, v11")
    a(f"v_cmp_eq_u32 vcc, 2, v6")
    a(f"v_mov_b32 v13, {KVHEAD}")
    a("v_cndmask_b32 v12, 0, v13, vcc")
    a("v_add_u32 v12, v12, v11")
    for r in range(4):
        a(f"ds_add_f32 v10, v{KVR+r} offset:{r*KVROW}")
        a(f"ds_add_f32 v10, v{KVR+4+r} offset:{r*KVROW+KVHEAD+8}")
    setexec(a, lanemask(lambda i, q: i < 2))
    for r in range(4):
        a(f"ds_add_f32 v10, v{KVR+8+r} offset:{r*KVROW+64}")
    setexec(a, lanemask(lambda i, q: i in (2, 3)))
    for r in range(4):
        a(f"ds_add_f32 v10, v{KVR+12+r} offset:{r*KVROW+64+KVHEAD}")
    setexec(a, lanemask(lambda i, q: q == 1))
    for r in range(3):
        a(f"ds_add_f32 v11, v{KVR+16+r} offset:{r*KVROW}")
    setexec(a, lanemask(lambda i, q: q == 2))
    for r in range(3):
        a(f"ds_add_f32 v11, v{KVR+20+r} offset:{r*KVROW+KVHEAD+8}")
    setexec(a, lanemask(lambda i, q: (q == 1 and i < 2) or (q == 2 and i in (2, 3))))
    for r in range(3):
        a(f"ds_add_f32 v12, v{KVR+24+r} offset:{r*KVROW+64}")
    a("s_mov_b64 exec, -1")
    a("s_waitcnt lgkmcnt(0)")
    a("s_barrier")
    a("s_lshl_b32 s46, s3, 8")
    a("v_lshl_add_u32 v10, v0, 2, s46")
    a(f"v_add_u32 v11, {K1_IMG}, v10")
    for r in range(4):
        a(f"ds_read_b32 v{16+r}, v11 offset:{r*1024}")
    a(f"s_mul_i32 s46, s39, {2*KVHEAD}")
    a(f"s_add_u32 s46, s46, {KV}")
    a("s_add_u32 s46, s46, s50")
    a("s_add_u32 s8, s34, s46")
    a("s_addc_u32 s9, s35, 0")
    a("s_and_b32 s9, s9, 0xffff")
    a(f"s_movk_i32 s10, {2*KVHEAD}")
    a("s_mov_b32 s11, 0x20000")
    a("s_waitcnt lgkmcnt(0)")
    for r in range(4):
        a(f"buffer_atomic_add_f32 v{16+r}, v10, s[8:11], 0 offen offset:{r*1024}")
    a("s_endpgm")
    a.label("K1_q")
    a.vm = vm_save
    a.lg = ["x", "x"]
    mainloop([4, 5, 6], False)
    a("s_lshl_b32 s46, s41, 4")
    a("s_add_u32 s46, s46, s39")
    a("s_mul_i32 s46, s46, 2560")
    a(f"s_add_u32 s46, s46, {PQ}")
    a("s_add_u32 s46, s46, s50")
    a("v_lshrrev_b32 v7, 1, v6")
    a("v_lshlrev_b32 v7, 9, v7")
    a("v_lshl_add_u32 v7, v5, 4, v7")
    a("v_and_b32 v8, 1, v6")
    a("v_lshl_add_u32 v7, v8, 3, v7")
    a("v_xor_b32 v8, 8, v7")
    for ti in (1, 2, 0):
        for u in range(2):
            c = AC + ti * 8 + u * 4
            for r in range(4):
                a(f"v_mul_f32 v{c+r}, v{c+r}, v{12+u}")
            d = 16 + (ti * 2 + u) * 2
            for h in range(2):
                phi_pair(a, f"v{c+2*h}", f"v{c+2*h+1}", f"v{d+h}", "v10", "v11")
            if ti:
                a(f"buffer_store_dwordx2 v[{d}:{d+1}], v7, s[4:7], s46 offen offset:{(ti-1)*1024+u*256}")
            else:
                setexec(a, lanemask(lambda i, q: q >= 2))
                a(f"buffer_store_dwordx2 v[{d}:{d+1}], v8, s[4:7], s46 offen offset:{3*512+u*256}")
                a("s_mov_b64 exec, -1")
    a.label("K1_end")
    a("s_endpgm")
    return [dict(name=n, grid=256, block=512, lds=K1_LDS, vgpr=256, agpr=0) for n in names]
```

```python
from asmlib import *
from layout import *
from gen_p0 import prologue, mksrd, f2u, sdivmod
from gen_k1 import entries, rnd, setexec, lanemask

K2_LDS = 72 * KB


def chan_q(a, mu, m2, t0, t1, half_n_sgpr_or_const_list):
    for step, op in enumerate(("v_permlane16_swap_b32", "v_permlane32_swap_b32")):
        a(f"v_mov_b32 {t0}, {mu}")
        a(f"v_mov_b32 {t1}, {m2}")
        a(f"{op} {mu}, {t0}")
        a(f"{op} {m2}, {t1}")
        a(f"v_add_f32 {m2}, {m2}, {t1}")
        a(f"v_sub_f32 {t1}, {mu}, {t0}")
        a(f"v_add_f32 {mu}, {mu}, {t0}")
        a(f"v_mul_f32 {mu}, 0.5, {mu}")
        a(f"v_mul_f32 {t1}, {t1}, {t1}")
        a(f"v_fma_f32 {m2}, {t1}, {half_n_sgpr_or_const_list[step]}, {m2}")


def gen_k2(a):
    names = entries(a, "k2", "K2_main")
    prologue(a, 256, "K2_end")
    PQR, KVR, OF, DT = 16, 80, 208, 248
    a("v_and_b32 v5, 15, v0")
    a("v_lshrrev_b32 v6, 4, v0")
    a("s_and_b32 s36, s2, 7")
    a("s_lshr_b32 s37, s2, 3")
    a("s_lshl_b32 s38, s36, 3")
    a("s_lshr_b32 s39, s37, 2")
    a("s_add_u32 s38, s38, s39")
    a("s_and_b32 s39, s37, 3")
    a(f"s_mul_i32 s40, s3, {8*KVHEAD}")
    a(f"s_add_u32 s40, s40, {KV}")
    a("s_add_u32 s40, s40, s50")
    a(f"v_mov_b32 v12, {OOB}")
    a("v_lshlrev_b32 v7, 5, v6")
    a(f"v_mad_u32_u24 v8, v5, 48, v7")
    a(f"v_mad_u32_u24 v8, v5, 48, v8")
    a("v_cmp_eq_u32 vcc, 3, v6")
    a("v_cndmask_b32 v8, v8, v12, vcc")
    a("v_cndmask_b32 v7, v7, v12, vcc")
    for par, dst in ((0, "v9"), (1, "v10")):
        a(f"v_mov_b32 {dst}, v12")
        for msk, row in (
            (lanemask(lambda i, q: (i & 3) == 0), 18),
            (lanemask(lambda i, q: i == 8 * par + 1), 16),
            (lanemask(lambda i, q: i == 8 * par + 5), 17),
        ):
            setexec(a, msk)
            a(f"v_add_u32 {dst}, {row*KVROW}, v7")
        a("s_mov_b64 exec, -1")
    a("s_lshl_b32 s41, s38, 4")
    a("s_lshl_b32 s42, s3, 2")
    a("s_add_u32 s41, s41, s42")
    a("s_mul_i32 s41, s41, 2560")
    a(f"s_add_u32 s41, s41, {PQ}")
    a("s_add_u32 s41, s41, s50")
    a("v_min_u32 v11, 2, v6")
    a("v_lshlrev_b32 v11, 9, v11")
    a("v_lshl_add_u32 v11, v5, 4, v11")
    for h in range(8):
        for t in range(2):
            ad = "v8" if t == 0 else ("v9", "v10")[h & 1]
            for hf in range(2):
                r = KVR + h * 16 + t * 8 + hf * 4
                a(f"buffer_load_dwordx4 v[{r}:{r+3}], {ad}, s[4:7], s40 offen offset:{(h&1)*KVHEAD+hf*16}", tag=("kv", h))
        for u in range(2):
            r = PQR + h * 8 + u * 4
            a(f"buffer_load_dwordx4 v[{r}:{r+3}], v11, s[4:7], s41 offen offset:{(h&1)*1024+u*256}", tag=("kv", h))
        if h & 1:
            a(f"s_add_u32 s40, s40, {2*KVHEAD}")
            a("s_add_u32 s41, s41, 2560")
    a("s_lshl_b32 s42, s39, 2")
    a("s_add_u32 s42, s42, s3")
    a(f"s_mul_i32 s42, s42, {45*KB}")
    a(f"s_add_u32 s42, s42, {WO}")
    a("v_lshlrev_b32 v13, 4, v0")
    wo_issued = [0]

    def issue_wo(n):
        for _ in range(n):
            f = wo_issued[0]
            if f >= 45:
                return
            a(f"buffer_load_dwordx4 a[{f*4}:{f*4+3}], v13, s[4:7], s42 offen offset:{(f&3)*1024}", tag=("wo", f))
            if f & 3 == 3:
                a("s_add_u32 s42, s42, 4096")
            wo_issued[0] += 1

    issue_wo(14)
    for u in range(2):
        a(f"v_mov_b32 v{OF+32+u*4+2}, 0")
        a(f"v_mov_b32 v{OF+32+u*4+3}, 0")
    LO = 2
    for h in range(8):
        a.wait_vm(("kv", h))
        issue_wo(4)
        for t in range(2):
            b = KVR + h * 16 + t * 8
            for r in range(4):
                a(f"v_cvt_pk_bf16_f32 v{b+r}, v{b+2*r}, v{b+2*r+1}")
        for u in range(2):
            p = PQR + h * 8 + u * 4
            for t in range(2):
                b = KVR + h * 16 + t * 8
                d = b + 4 if u == 0 else DT + t * 4
                a(f"v_mfma_f32_16x16x32_bf16 v[{d}:{d+3}], v[{b}:{b+3}], v[{p}:{p+3}], 0")
        for u in range(2):
            d0 = KVR + h * 16 + 4 if u == 0 else DT
            d1 = KVR + h * 16 + 12 if u == 0 else DT + 4
            rnd(a, f"v{d1}", f"v{d1}")
            a(f"v_add_f32 v{d1}, {f2u(1e-6)}, v{d1}")
            rnd(a, f"v{d1}", f"v{d1}")
            a(f"v_rcp_f32 v{d1}, v{d1}")
            a(f"v_cvt_pk_bf16_f32 v{d1+2}, v{d0}, v{d0+1}")
            a(f"v_cvt_pk_bf16_f32 v{d1+3}, v{d0+2}, v{d0+3}")
            rnd(a, f"v{d1+1}", f"v{d1+1}")
            a(f"v_lshlrev_b32 v{d0}, 16, v{d1+2}")
            a(f"v_and_b32 v{d0+1}, 0xffff0000, v{d1+2}")
            a(f"v_lshlrev_b32 v{d0+2}, 16, v{d1+3}")
            a(f"v_and_b32 v{d0+3}, 0xffff0000, v{d1+3}")
            for r in range(4):
                a(f"v_mul_f32 v{d0+r}, v{d0+r}, v{d1}")
            o = OF + (h >> 1) * 8 + u * 4 + (h & 1) * 2
            a(f"v_cvt_pk_bf16_f32 v{o}, v{d0}, v{d0+1}")
            a(f"v_cvt_pk_bf16_f32 v{o+1}, v{d0+2}, v{d0+3}")
            pr = h >> 1
            if (h & 1) == 0:
                a(f"v_mul_f32 v{LO+u}, v{d1+1}, v{d1}")
            else:
                if (pr & 1) == 0:
                    a(f"v_fma_f32 v{14+u}, v{d1+1}, v{d1}, v{LO+u}")
                else:
                    a(f"v_fmac_f32 v{LO+u}, v{d1+1}, v{d1}")
                    a(f"v_cvt_pk_bf16_f32 v{OF+32+u*4+(pr>>1)}, v{14+u}, v{LO+u}")
    issue_wo(45)
    a("s_and_b32 s43, s3, 1")
    a("s_lshr_b32 s44, s3, 1")
    a("s_mul_i32 s45, s38, 36864")
    a("s_mul_i32 s46, s39, 9216")
    a("s_add_u32 s45, s45, s46")
    a("s_mul_i32 s46, s44, 5120")
    a("s_add_u32 s45, s45, s46")
    a("s_lshl_b32 s46, s43, 8")
    a("s_add_u32 s45, s45, s46")
    a("s_add_u32 s45, s45, s50")
    a("v_lshrrev_b32 v7, 1, v6")
    a("v_lshlrev_b32 v7, 9, v7")
    a("v_lshl_add_u32 v7, v5, 4, v7")
    a("v_and_b32 v8, 1, v6")
    a("v_lshl_add_u32 v7, v8, 3, v7")
    a(f"s_add_u32 s46, s45, {XA}")
    RES = 16
    for i in range(5):
        if i == 4:
            a("s_add_u32 s46, s46, 4096")
        a(f"buffer_load_dwordx2 v[{RES+2*i}:{RES+2*i+1}], v7, s[4:7], s46 offen offset:{(i&3)*1024}", tag="res")
    A2 = 180
    for ks in range(5):
        for ct in range(9):
            f = ks * 9 + ct
            a.wait_vm(("wo", f))
            for u in range(2):
                c = A2 + (ct * 2 + u) * 4
                o = OF + ks * 8 + u * 4
                cin = f"a[{c}:{c+3}]" if ks else "0"
                a(f"v_mfma_f32_16x16x32_bf16 a[{c}:{c+3}], a[{f*4}:{f*4+3}], v[{o}:{o+3}], {cin}")
    a(f"s_mul_i32 s47, s3, {18*KB}")
    a("v_add_u32 v8, s47, v13")
    for t in range(18):
        c = A2 + t * 4
        a(f"ds_write_b128 v8, a[{c}:{c+3}] offset:{t*1024}")
    a("s_waitcnt lgkmcnt(0)")
    a("s_barrier")
    a("s_mul_i32 s47, s44, 10240")
    a("s_lshl_b32 s48, s43, 10")
    a("s_add_u32 s47, s47, s48")
    a("v_add_u32 v8, s47, v13")
    PR = 80
    XV = 32
    for r in range(4):
        a(f"v_mov_b32 v{XV+16+r}, 0")
    a(f"s_add_u32 s46, s45, {X1}")

    def fin(i):
        for w in range(4):
            r = PR + (i * 4 + w) * 4
            a(f"ds_read_b128 v[{r}:{r+3}], v8 offset:{w*18*KB + i*2048}", tag=("p", i))

    def fin2(i):
        a.wait_lg(("p", i))
        b = PR + i * 16
        for r in range(4):
            a(f"v_add_f32 v{b+r}, v{b+r}, v{b+4+r}")
            a(f"v_add_f32 v{b+8+r}, v{b+8+r}, v{b+12+r}")
        for r in range(4):
            a(f"v_add_f32 v{b+r}, v{b+r}, v{b+8+r}")
        a(f"v_cvt_pk_bf16_f32 v{b+4}, v{b}, v{b+1}")
        a(f"v_cvt_pk_bf16_f32 v{b+5}, v{b+2}, v{b+3}")
        for hf in range(2):
            a(f"v_lshlrev_b32 v{b+2*hf}, 16, v{b+4+hf}")
            a(f"v_and_b32 v{b+2*hf+1}, 0xffff0000, v{b+4+hf}")
            a(f"v_lshlrev_b32 v{b+8+2*hf}, 16, v{RES+2*i+hf}")
            a(f"v_and_b32 v{b+8+2*hf+1}, 0xffff0000, v{RES+2*i+hf}")
        for r in range(4):
            a(f"v_add_f32 v{b+r}, v{b+r}, v{b+8+r}")
        a(f"v_cvt_pk_bf16_f32 v{b+4}, v{b}, v{b+1}")
        a(f"v_cvt_pk_bf16_f32 v{b+5}, v{b+2}, v{b+3}")
        if i == 4:
            a("s_add_u32 s46, s46, 4096")
        a(f"buffer_store_dwordx2 v[{b+4}:{b+5}], v7, s[4:7], s46 offen offset:{(i&3)*1024} sc1")
        for hf in range(2):
            a(f"v_lshlrev_b32 v{XV+i*4+2*hf}, 16, v{b+4+hf}")
            a(f"v_and_b32 v{XV+i*4+2*hf+1}, 0xffff0000, v{b+4+hf}")

    for i in range(4):
        fin(i)
    a.wait_vm("res")
    for i in range(4):
        fin2(i)
    a("s_cmp_lg_u32 s44, 0")
    a("s_cbranch_scc1 K2_skip5")
    fin(4)
    fin2(4)
    a.label("K2_skip5")
    a(f"s_mov_b32 s47, {f2u(1/16)}")
    a(f"s_mov_b32 s48, {f2u(8.0)}")
    a(f"s_mov_b32 s49, {f2u(16.0)}")
    a("s_cmp_eq_u32 s44, 0")
    a(f"s_cselect_b32 s47, {f2u(1/20)}, s47")
    a(f"s_cselect_b32 s48, {f2u(10.0)}, s48")
    a(f"s_cselect_b32 s49, {f2u(20.0)}, s49")
    a(f"v_add_f32 v10, v{XV}, v{XV+1}")
    a(f"v_add_f32 v11, v{XV+2}, v{XV+3}")
    for r in range(4, 20, 2):
        a(f"v_add_f32 v10, v10, v{XV+r}")
        a(f"v_add_f32 v11, v11, v{XV+r+1}")
    a("v_add_f32 v10, v10, v11")
    a("v_mul_f32 v10, s47, v10")
    a("v_mov_b32 v11, 0")
    for r in range(16):
        a(f"v_sub_f32 v{XV+r}, v{XV+r}, v10")
        a(f"v_fmac_f32 v11, v{XV+r}, v{XV+r}")
    a("s_cbranch_scc0 K2_skip6")
    for r in range(16, 20):
        a(f"v_sub_f32 v{XV+r}, v{XV+r}, v10")
        a(f"v_fmac_f32 v11, v{XV+r}, v{XV+r}")
    a.label("K2_skip6")
    chan_q(a, "v10", "v11", "v2", "v3", ["s48", "s49"])
    a("s_lshl_b32 s46, s38, 11")
    a("s_lshl_b32 s47, s43, 10")
    a("s_add_u32 s46, s46, s47")
    a("s_lshl_b32 s47, s39, 4")
    a("s_add_u32 s46, s46, s47")
    a("s_lshl_b32 s47, s44, 3")
    a("s_add_u32 s46, s46, s47")
    a(f"s_add_u32 s46, s46, {ST1}")
    a("s_add_u32 s46, s46, s50")
    a("v_lshlrev_b32 v8, 6, v5")
    setexec(a, 0xFFFF)
    a("buffer_store_dwordx2 v[10:11], v8, s[4:7], s46 offen")
    a.label("K2_end")
    a("s_endpgm")
    return [dict(name=n, grid=256, block=256, lds=K2_LDS, vgpr=256, agpr=256) for n in names]
```

```python
import gen_k1, gen_k2, gen_b1, gen_b2
def gen_all(a):
    k1 = gen_k1.gen_k1(a); k2 = gen_k2.gen_k2(a); b1 = gen_b1.gen_b1(a); b2 = gen_b2.gen_b2(a)
    ks = k1 + k2 + b1 + b2
    launches = []
    for l in range(2):
        launches += [k1[l], k2[l], b1[l], b2[l]]
    return ks, launches
```

```python
from asmlib import *
from layout import *


def magic(d):
    return (1 << 32) // d + 1


def sdivmod(a, q, r, x, d, tmp):
    a(f"s_mov_b32 {tmp}, {magic(d)}")
    a(f"s_mul_hi_u32 {q}, {x}, {tmp}")
    a(f"s_mul_i32 {tmp}, {q}, {d}")
    a(f"s_sub_u32 {r}, {x}, {tmp}")


def prologue(a, nwg, endlabel):
    a(f"s_cmp_ge_u32 s2, {nwg}")
    a(f"s_cbranch_scc1 {endlabel}")
    a("s_load_dwordx16 s[16:31], s[0:1], 0")
    a("s_load_dwordx4 s[32:35], s[0:1], 64")
    a("v_lshrrev_b32 v1, 6, v0")
    a("v_and_b32 v0, 63, v0")
    a("v_readfirstlane_b32 s3, v1")
    a("s_waitcnt lgkmcnt(0)")
    a("s_mov_b32 s4, s34")
    a("s_and_b32 s5, s35, 0xffff")
    a(f"s_mov_b32 s6, {WS_BYTES}")
    a("s_mov_b32 s7, 0x20000")


def mksrd(a, d, lo, hi, nbytes):
    a(f"s_mov_b32 s{d}, {lo}")
    a(f"s_and_b32 s{d+1}, {hi}, 0xffff")
    a(f"s_mov_b32 s{d+2}, {nbytes}")
    a(f"s_mov_b32 s{d+3}, 0x20000")


def split3(a, x, t0, t1, o0, o1):
    a(f"v_cvt_pk_bf16_f32 {t0}, {x}, 0")
    a(f"v_lshlrev_b32 {t1}, 16, {t0}")
    a(f"v_sub_f32 {x}, {x}, {t1}")
    a(f"v_cvt_pk_bf16_f32 {t1}, {x}, 0")
    a(f"v_lshl_or_b32 {o0}, {t1}, 16, {t0}")
    a(f"v_lshlrev_b32 {t1}, 16, {t1}")
    a(f"v_sub_f32 {x}, {x}, {t1}")
    a(f"v_cvt_pk_bf16_f32 {o1}, {x}, 0")


NA, NB, NC, ND, NE, NZ = 432, 216, 96, 36, 32, 8
P0_WGS = NA + NB + NC + ND + NE + NZ
STORE_MOD = "sc1"


def gen_p0(a, name="p0_kernel"):
    a.raw(kernel_header(name))
    prologue(a, P0_WGS, "P0_end")
    a("v_and_b32 v5, 15, v0")
    a("v_lshrrev_b32 v6, 4, v0")
    a(f"s_cmp_ge_u32 s2, {NA}")
    a("s_cbranch_scc1 P0_notA")
    sdivmod(a, "s36", "s37", "s2", 144, "s38")
    sdivmod(a, "s39", "s40", "s37", 72, "s38")
    a("s_cmp_eq_u32 s39, 0")
    a("s_cselect_b32 s8, s24, s26")
    a("s_cselect_b32 s9, s25, s27")
    a("s_and_b32 s9, s9, 0xffff")
    a(f"s_mov_b32 s10, {D*F*2}")
    a("s_mov_b32 s11, 0x20000")
    a(f"s_mov_b32 s12, {F*2}")
    a("s_mul_i32 s15, s36, 24")
    a("s_mul_i32 s38, s3, 6")
    a("s_add_u32 s15, s15, s38")
    a(f"s_mul_i32 s13, s15, {8*F*2}")
    a("v_and_b32 v7, 3, v5")
    a("v_and_b32 v8, 4, v5")
    a("v_lshl_or_b32 v7, v8, 1, v7")
    a("v_and_b32 v8, 8, v5")
    a("v_lshrrev_b32 v8, 1, v8")
    a("v_or_b32 v7, v7, v8")
    a("v_lshl_or_b32 v7, v6, 4, v7")
    a("s_lshl_b32 s38, s40, 6")
    a("v_add_u32 v7, s38, v7")
    a("v_lshlrev_b32 v1, 1, v7")
    a("s_lshl_b32 s38, s40, 2")
    a("v_add_u32 v7, s38, v6")
    a(f"s_mov_b32 s38, {36*KB}")
    a("v_mul_lo_u32 v2, v7, s38")
    a("s_lshl_b32 s41, s39, 8")
    a(f"s_add_u32 s38, s41, {WGU}")
    a("v_lshl_add_u32 v8, v5, 4, s38")
    a("v_add_u32 v2, v2, v8")
    a("v_mov_b32 v3, 0x800")
    a("s_movk_i32 s14, 0x200")
    a("s_lshr_b32 s38, s36, 1")
    a("s_lshl_b32 s38, s38, 9")
    a("s_add_u32 s38, s38, s41")
    a("s_and_b32 s42, s36, 1")
    a("s_lshl_b32 s42, s42, 3")
    a("s_add_u32 s38, s38, s42")
    a(f"s_add_u32 s38, s38, {CSGU}")
    a("v_lshl_add_u32 v8, v5, 4, s38")
    a("v_lshl_add_u32 v80, v7, 10, v8")
    a("s_mov_b32 s43, 1")
    a("s_branch P0_gather")
    a.label("P0_notA")
    a(f"s_cmp_ge_u32 s2, {NA+NB}")
    a("s_cbranch_scc1 P0_notB")
    a(f"s_sub_u32 s37, s2, {NA}")
    sdivmod(a, "s39", "s40", "s37", 9, "s38")
    mksrd(a, 8, "s28", "s29", D * F * 2)
    a(f"s_movk_i32 s12, {D*2}")
    a("s_mul_i32 s15, s39, 24")
    a("s_mul_i32 s38, s3, 6")
    a("s_add_u32 s15, s15, s38")
    a(f"s_mul_i32 s13, s15, {8*D*2}")
    sdivmod(a, "s41", "s15", "s15", 144, "s38")
    a("s_lshl_b32 s38, s40, 6")
    a("v_add_u32 v7, s38, v0")
    a("v_lshlrev_b32 v1, 1, v7")
    a("s_lshl_b32 s38, s40, 2")
    a("v_add_u32 v7, s38, v6")
    a("v_mul_u32_u24 v8, 57, v7")
    a("v_lshrrev_b32 v8, 9, v8")
    a("v_mul_u32_u24 v9, 9, v8")
    a("v_sub_u32 v9, v7, v9")
    a("v_mul_u32_u24 v10, 36, v9")
    a(f"v_cmp_gt_u32 vcc, {UA}, v9")
    a("v_cndmask_b32 v10, v10, v9, vcc")
    a("v_mov_b32 v3, 0x400")
    a(f"v_mov_b32 v11, {UA*1024}")
    a("v_cndmask_b32 v3, v3, v11, vcc")
    a("s_lshl_b32 s38, s41, 2")
    a("v_add_u32 v8, s38, v8")
    a("v_mul_u32_u24 v8, 324, v8")
    a("v_add_u32 v8, v8, v10")
    a(f"s_mov_b32 s38, {WD}")
    a("v_lshl_add_u32 v9, v5, 4, s38")
    a("v_lshl_add_u32 v2, v8, 10, v9")
    a("s_movk_i32 s14, 0x100")
    a("s_mov_b32 s43, 0")
    a("s_branch P0_gather")
    a.label("P0_notB")
    a(f"s_cmp_ge_u32 s2, {NA+NB+NC}")
    a("s_cbranch_scc1 P0_notC")
    a(f"s_sub_u32 s37, s2, {NA+NB}")
    a("s_lshr_b32 s36, s37, 5")
    a("s_and_b32 s40, s37, 31")
    a("s_lshr_b32 s39, s40, 1")
    mksrd(a, 8, "s18", "s19", D * 3 * D * 2)
    a(f"s_movk_i32 s12, {3*D*2}")
    a("s_mul_i32 s15, s36, 24")
    a("s_mul_i32 s38, s3, 6")
    a("s_add_u32 s15, s15, s38")
    a(f"s_mul_i32 s13, s15, {8*3*D*2}")
    a("s_mul_i32 s41, s39, 36")
    a("v_lshrrev_b32 v7, 1, v6")
    a("v_mul_u32_u24 v7, 576, v7")
    a("v_and_b32 v8, 1, v6")
    a("v_mad_u32_u24 v7, v8, 18, v7")
    a("v_add3_u32 v7, v7, v5, 64")
    a("v_add_u32 v7, 512, v7")
    a("v_and_b32 v9, 1, v5")
    a("v_bfe_u32 v8, v5, 1, 1")
    a("v_mad_u32_u24 v8, v8, 18, v9")
    a("v_add_u32 v8, 592, v8")
    a("v_lshrrev_b32 v10, 3, v5")
    a("v_mad_u32_u24 v10, v10, 18, v9")
    a("v_add_u32 v10, 1168, v10")
    a("v_cmp_gt_u32 vcc, 4, v5")
    a("v_cndmask_b32 v8, v10, v8, vcc")
    a("v_add_u32 v9, 20, v5")
    a("v_cmp_gt_u32 vcc, 12, v5")
    a("v_cndmask_b32 v8, v9, v8, vcc")
    a("v_lshl_add_u32 v9, v6, 4, v5")
    a("v_subrev_u32 v9, 16, v9")
    a("v_cmp_eq_u32 vcc, 0, v6")
    a("v_cndmask_b32 v8, v9, v8, vcc")
    a("s_bitcmp1_b32 s40, 0")
    a("s_cselect_b64 s[44:45], -1, 0")
    a("v_cndmask_b32 v7, v7, v8, s[44:45]")
    a("v_add_u32 v7, s41, v7")
    a("v_lshlrev_b32 v1, 1, v7")
    a("s_mov_b32 s46, 0")
    a("s_mov_b32 s47, 0xffff0000")
    a("s_and_b64 s[46:47], s[46:47], s[44:45]")
    a("s_mov_b32 vcc_lo, 0xcc0")
    a("s_mov_b32 vcc_hi, 0xffff0000")
    a("s_and_b64 vcc, vcc, s[44:45]")
    a(f"v_mov_b32 v9, {OOB}")
    a("v_cndmask_b32 v1, v1, v9, vcc")
    a("s_and_b32 s38, s40, 1")
    a("s_lshl_b32 s38, s38, 12")
    a(f"s_mul_i32 s42, s39, {133*KB}")
    a("s_add_u32 s38, s38, s42")
    a(f"s_add_u32 s38, s38, {WQKV}")
    a("v_lshl_add_u32 v2, v5, 4, s38")
    a("v_lshl_add_u32 v2, v6, 10, v2")
    a("v_cndmask_b32 v2, v2, v9, s[46:47]")
    a(f"v_mov_b32 v3, {7*KB}")
    a("s_movk_i32 s14, 0x100")
    a("s_lshl_b32 s38, s36, 8")
    a(f"s_add_u32 s38, s38, {18*7*KB}")
    a("v_add_u32 v80, s38, v2")
    a("s_mov_b32 s43, 2")
    a.label("P0_gather")
    for n in range(48):
        a(f"buffer_load_ushort v{8+n}, v1, s[8:11], s13 offen", tag=("g", n // 8))
        if n < 47:
            a("s_add_u32 s13, s13, s12")
    a("v_mov_b32 v81, 0")
    a("s_mov_b32 s48, 0x3f803f80")
    for rg in range(6):
        a.wait_vm(("g", rg))
        for r in range(4):
            b = 8 + rg * 8 + 2 * r
            a(f"v_lshl_or_b32 v{56+rg*4+r}, v{b+1}, 16, v{b}")
        a("s_lshr_b32 s38, s15, 2")
        a("s_and_b32 s41, s15, 3")
        a("s_mul_i32 s41, s41, s14")
        a("v_mad_u32_u24 v4, s38, v3, v2")
        a("s_add_u32 s15, s15, 1")
        a(f"buffer_store_dwordx4 v[{56+rg*4}:{59+rg*4}], v4, s[4:7], s41 offen {STORE_MOD}", tag="st")
        for r in range(4):
            a(f"v_dot2_f32_bf16 v81, v{56+rg*4+r}, s48, v81")
    a("s_cmp_eq_u32 s43, 0")
    a("s_cbranch_scc1 P0_end")
    a("s_lshl_b32 s38, s3, 8")
    a("v_lshl_add_u32 v4, v0, 2, s38")
    a("ds_write_b32 v4, v81")
    a("s_waitcnt lgkmcnt(0)")
    a("s_barrier")
    a("s_cmp_lg_u32 s3, 0")
    a("s_cbranch_scc1 P0_end")
    a("ds_read_b32 v8, v4 offset:256")
    a("ds_read_b32 v9, v4 offset:512")
    a("ds_read_b32 v10, v4 offset:768")
    a("s_waitcnt lgkmcnt(0)")
    a("v_add_f32 v81, v81, v8")
    a("v_add_f32 v9, v9, v10")
    a("v_add_f32 v81, v81, v9")
    split3(a, "v81", "v8", "v9", "v12", "v13")
    a("v_mov_b32 v14, 0")
    a("v_mov_b32 v15, 0")
    a("s_cmp_eq_u32 s43, 2")
    a("s_cbranch_scc1 P0_csC")
    a("s_cmp_eq_u32 s36, 2")
    a("s_cbranch_scc1 P0_cs4")
    a(f"buffer_store_dwordx2 v[12:13], v80, s[4:7], 0 offen")
    a("s_endpgm")
    a.label("P0_csC")
    a("s_cmp_lg_u32 s36, 2")
    a("s_cbranch_scc1 P0_cs4")
    a("v_mov_b32 v16, 0")
    a("v_mov_b32 v17, 0")
    a("v_mov_b32 v18, 0")
    a("v_mov_b32 v19, 0")
    a(f"buffer_store_dwordx4 v[16:19], v80, s[4:7], 0 offen offset:256")
    a.label("P0_cs4")
    a(f"buffer_store_dwordx4 v[12:15], v80, s[4:7], 0 offen")
    a("s_endpgm")
    a.label("P0_notC")
    a(f"s_cmp_ge_u32 s2, {NA+NB+NC+ND}")
    a("s_cbranch_scc1 P0_notD")
    a.vm = []
    a(f"s_sub_u32 s37, s2, {NA+NB+NC}")
    sdivmod(a, "s39", "s40", "s37", 9, "s38")
    mksrd(a, 8, "s20", "s21", D * D * 2)
    a("s_lshl_b32 s38, s40, 6")
    a("v_add_u32 v7, s38, v0")
    a("v_lshlrev_b32 v1, 1, v7")
    a("s_mul_i32 s41, s39, 144")
    a("s_lshl_b32 s38, s3, 2")
    a("s_add_u32 s42, s41, s38")
    a(f"s_mul_i32 s42, s42, {D*2}")
    a("s_lshr_b32 s38, s3, 1")
    a("s_mul_i32 s38, s38, 18")
    a("s_add_u32 s41, s41, s38")
    a("s_and_b32 s38, s3, 1")
    a("s_add_u32 s41, s41, s38")
    a("s_add_u32 s41, s41, 16")
    a(f"s_mul_i32 s41, s41, {D*2}")
    for ks in range(4):
        for j in range(8):
            row = 36 * ks + 18 * (j >> 2) + (j & 3)
            a(f"s_add_u32 s13, s42, {row*D*2}")
            a(f"buffer_load_ushort v{8+ks*8+j}, v1, s[8:11], s13 offen", tag=("g", ks))
    for j in range(4):
        a(f"s_add_u32 s13, s41, {36*j*D*2}")
        a(f"buffer_load_ushort v{40+j}, v1, s[8:11], s13 offen", tag=("g", 4))
    a("s_lshl_b32 s38, s40, 2")
    a("v_add_u32 v7, s38, v6")
    a("v_mul_u32_u24 v2, 57, v7")
    a("v_lshrrev_b32 v2, 9, v2")
    a("v_mul_u32_u24 v3, 9, v2")
    a("v_sub_u32 v3, v7, v3")
    a("v_lshlrev_b32 v2, 2, v2")
    a("v_add_u32 v2, s39, v2")
    a("v_mad_u32_u24 v2, v2, 45, v3")
    a("s_lshl_b32 s38, s3, 8")
    a(f"s_add_u32 s38, s38, {WO}")
    a("v_lshl_add_u32 v3, v5, 4, s38")
    a("v_lshl_add_u32 v2, v2, 10, v3")
    a("v_mov_b32 v74, 0")
    a("v_mov_b32 v75, 0")
    for ks in range(5):
        a.wait_vm(("g", ks))
        for r in range(4 if ks < 4 else 2):
            b = 8 + ks * 8 + 2 * r
            a(f"v_lshl_or_b32 v{56+ks*4+r}, v{b+1}, 16, v{b}")
        a(f"s_mov_b32 s38, {ks*9*KB}")
        a(f"buffer_store_dwordx4 v[{56+ks*4}:{59+ks*4}], v2, s[4:7], s38 offen {STORE_MOD}", tag="st")
    a("s_endpgm")
    a.label("P0_notD")
    a(f"s_cmp_ge_u32 s2, {NA+NB+NC+ND+NE}")
    a("s_cbranch_scc1 P0_zero")
    a.vm = []
    a(f"s_sub_u32 s37, s2, {NA+NB+NC+ND}")
    a("s_lshl_b32 s37, s37, 2")
    a("s_add_u32 s37, s37, s3")
    mksrd(a, 8, "s16", "s17", XBYTES)
    a("s_lshl_b32 s38, s37, 4")
    a("v_add_u32 v7, s38, v5")
    a("v_mul_u32_u24 v1, 1152, v7")
    a("v_lshl_add_u32 v1, v6, 4, v1")
    for i in range(18):
        a(f"buffer_load_dwordx4 v[{8+4*i}:{11+4*i}], v1, s[8:11], 0 offen offset:{64*i}", tag=("x", i))
    a("s_lshr_b32 s39, s37, 1")
    a("s_mul_i32 s39, s39, 36864")
    a(f"s_add_u32 s39, s39, {L0+XA}")
    a("v_and_b32 v2, 31, v7")
    a("v_lshlrev_b32 v2, 4, v2")
    a("v_lshl_add_u32 v2, v6, 9, v2")
    a("s_mov_b32 s48, 0x3f803f80")
    a("v_mov_b32 v81, 0")
    a("v_mov_b32 v82, 0")
    for i in range(18):
        a.wait_vm(("x", i))
        a(f"buffer_store_dwordx4 v[{8+4*i}:{11+4*i}], v2, s[4:7], s39 offen {STORE_MOD}", tag="st")
        a("s_add_u32 s39, s39, 2048")
        for r in range(4):
            a(f"v_dot2_f32_bf16 v{81+(r&1)}, v{8+4*i+r}, s48, v{81+(r&1)}")
    a("v_add_f32 v81, v81, v82")
    a(f"v_mul_f32 v84, {f2u(1.0/144)}, v81")
    a("v_mov_b32 v85, 0")
    a("v_mov_b32 v86, 0")
    for r in range(72):
        a(f"v_lshlrev_b32 v82, 16, v{8+r}")
        a(f"v_and_b32 v83, 0xffff0000, v{8+r}")
        a("v_sub_f32 v82, v82, v84")
        a("v_sub_f32 v83, v83, v84")
        a("v_fmac_f32 v85, v82, v82")
        a("v_fmac_f32 v86, v83, v83")
    a("v_add_f32 v85, v85, v86")
    a("v_lshlrev_b32 v2, 5, v7")
    a("v_lshl_add_u32 v2, v6, 3, v2")
    a(f"s_mov_b32 s39, {L0+STA}")
    a(f"buffer_store_dwordx2 v[84:85], v2, s[4:7], s39 offen")
    a("s_endpgm")
    a.label("P0_zero")
    a(f"s_sub_u32 s37, s2, {NA+NB+NC+ND+NE}")
    a("s_lshr_b32 s38, s37, 2")
    a(f"s_mul_i32 s38, s38, {LSTRIDE}")
    a("s_and_b32 s39, s37, 3")
    a("s_lshl_b32 s39, s39, 14")
    a("s_add_u32 s38, s38, s39")
    a("s_lshl_b32 s39, s3, 12")
    a("s_add_u32 s38, s38, s39")
    a(f"s_add_u32 s38, s38, {L0+KV}")
    a("v_lshlrev_b32 v1, 4, v0")
    for r in range(4):
        a(f"v_mov_b32 v{8+r}, 0")
    for r in range(4):
        a(f"buffer_store_dwordx4 v[8:11], v1, s[4:7], s38 offen offset:{1024*r}")
    a.label("P0_end")
    a("s_endpgm")
    return dict(name=name, grid=P0_WGS, block=256, lds=1024, vgpr=88, agpr=0)


import struct


def f2u(x):
    return "0x%08x" % struct.unpack("<I", struct.pack("<f", x))[0]
```

```python
S, D, F = 2048, 576, 4608
KB = 1024
UA = 3


def _al(x, a=4096):
    return (x + a - 1) // a * a


_off = 0


def _alloc(n):
    global _off
    o = _off
    _off = _al(_off + n)
    return o


WGU = _alloc(288 * 36 * KB)
CSGU = _alloc(288 * KB)
WD = _alloc(16 * 324 * KB)
WQKV = _alloc(16 * 19 * 7 * KB)
WO = _alloc(16 * 45 * KB)
XBYTES = S * D * 2
KVROW = 96
KVHEAD = 19 * KVROW
KVBYTES = 65536
L0 = _off
XA = _alloc(XBYTES) - L0
STA = _alloc(S * 32) - L0
PQ = _alloc(64 * 16 * 5 * 512) - L0
KV = _alloc(KVBYTES) - L0
X1 = _alloc(XBYTES) - L0
ST1 = _alloc(S * 64) - L0
HB = _alloc(S * F * 2) - L0
PART = _alloc(4 * S * D * 4) - L0
LSTRIDE = _off - L0
WS_END = L0 + 2 * LSTRIDE
WS_BYTES = 256 << 20
assert WS_END < WS_BYTES
OOB = 0x20000000


def wd_streampos(unit, ks):
    return ks * UA + unit if unit < UA else UA * 36 + (unit - UA) * 36 + ks
```

```python
import sys
from asmlib import *
from layout import *
import gen_p0

HEADER = open("interleave_layers__linear_attn_block__geglu_ffn__prompt.s.ref").read().split("; Override launch")[0]

def build(seq_fn):
    a = Asm()
    kernels, launches = seq_fn(a)
    out = [HEADER.rstrip()]
    for k in launches:
        out.append(f"; @launch kernel={k['name']} grid=({k['grid']},1,1) block=({k['block']},1,1) lds={k['lds']}")
    out.append('.amdgcn_target "amdgcn-amd-amdhsa--gfx950"\n.text')
    out.append(a.text())
    out.append('.section .rodata,"a"')
    for k in kernels:
        out.append(kernel_desc(k["name"], k["vgpr"], k["agpr"], k.get("sgpr", 96)))
    return "\n".join(out) + "\n"

def seq(a):
    ks = []
    p0 = gen_p0.gen_p0(a); ks.append(p0)
    launches = [p0]
    try:
        import gen_main
        more, l2 = gen_main.gen_all(a)
        ks += more; launches += l2
    except ModuleNotFoundError:
        pass
    return ks, launches

if __name__ == "__main__":
    out = sys.argv[1] if len(sys.argv) > 1 else "k.s"
    open(out, "w").write(build(seq))
    print("wrote", out)
```

```python
import re

_REG = re.compile(r"^(-|abs\()?([vas])(\d+)\)?$")
_RNG = re.compile(r"^(-)?([vas])\[(\d+):(\d+)\]$")


def regs_of(op):
    op = op.strip()
    m = _REG.match(op)
    if m:
        return [(m.group(2), int(m.group(3)))]
    m = _RNG.match(op)
    if m:
        return [(m.group(2), i) for i in range(int(m.group(3)), int(m.group(4)) + 1)]
    if op == "vcc":
        return [("s", "vcc_lo"), ("s", "vcc_hi")]
    if op in ("vcc_lo", "vcc_hi"):
        return [("s", op)]
    if op == "exec":
        return [("x", "exec")]
    if op == "m0":
        return [("s", "m0")]
    return []


TRANS = ("v_exp_f32", "v_log_f32", "v_rcp_f32", "v_rsq_f32", "v_sqrt_f32", "v_sin_f32", "v_cos_f32")


class Ins:
    __slots__ = ("text", "mn", "dst", "src", "kind", "passes", "srcc", "states", "wide_store_data")

    def __init__(self, text):
        self.text = text
        body = text.split(";")[0].strip()
        parts = body.split(None, 1)
        self.mn = mn = parts[0]
        rest = parts[1] if len(parts) > 1 else ""
        ops = [o.strip() for o in rest.split(",")] if rest else []
        ops = [o.split()[0] if o else o for o in ops]
        mods = rest
        self.dst, self.src, self.srcc = [], [], []
        self.passes = 0
        self.states = 1
        self.wide_store_data = []
        R = regs_of
        if mn == "s_nop":
            self.kind = "nop"
            self.states = int(ops[0], 0) + 1
        elif mn.startswith("v_mfma"):
            self.kind = "mfma"
            self.dst = R(ops[0])
            self.src = R(ops[1]) + R(ops[2])
            self.srcc = R(ops[3])
            self.passes = 8 if "32x32x16" in mn else 4
        elif mn.startswith("v_"):
            self.kind = "trans" if mn.split("_e32")[0] in TRANS else "valu"
            if mn.startswith("v_cmp"):
                self.dst = R(ops[0])
                self.src = sum((R(o) for o in ops[1:]), [])
                if mn.startswith("v_cmpx"):
                    self.dst += [("x", "exec")]
            elif "permlane" in mn and "swap" in mn:
                self.dst = R(ops[0]) + R(ops[1])
                self.src = R(ops[0]) + R(ops[1])
            elif mn.startswith(("v_add_co", "v_sub_co", "v_addc_co", "v_subb_co")):
                self.dst = R(ops[0]) + R(ops[1])
                self.src = sum((R(o) for o in ops[2:]), [])
            else:
                self.dst = R(ops[0])
                self.src = sum((R(o) for o in ops[1:]), [])
                if mn.startswith(("v_fmac", "v_dot2c", "v_writelane")) or "dpp" in mn:
                    self.src += R(ops[0])
        elif mn.startswith(("buffer_", "global_")):
            self.kind = "vmem"
            if mn in ("buffer_wbl2", "buffer_inv"):
                pass
            elif " lds" in (" " + mods + " ").replace(",", " ") or mn.startswith("global_load_lds"):
                self.src = sum((R(o) for o in ops), []) + [("s", "m0")]
                self.kind = "vmem_lds"
            elif "load" in mn:
                self.dst = R(ops[0])
                self.src = sum((R(o) for o in ops[1:]), [])
                if "d16" in mn:
                    self.src += R(ops[0])
            elif "atomic" in mn and " sc0" in " " + mods:
                if mn.startswith("global"):
                    self.dst = R(ops[0])
                    self.src = sum((R(o) for o in ops[1:]), [])
                else:
                    self.dst = R(ops[0])
                    self.src = sum((R(o) for o in ops), [])
            else:
                self.src = sum((R(o) for o in ops), [])
                if "x4" in mn or "x3" in mn:
                    self.wide_store_data = R(ops[0]) if mn.startswith("buffer") else R(ops[1])
        elif mn.startswith("ds_"):
            self.kind = "ds"
            if "read" in mn or "permute" in mn or "swizzle" in mn or "rtn" in mn:
                self.dst = R(ops[0])
                self.src = sum((R(o) for o in ops[1:]), [])
            else:
                self.src = sum((R(o) for o in ops), [])
        elif mn.startswith("s_"):
            self.kind = "salu"
            if mn.startswith(("s_load", "s_memtime", "s_memrealtime", "s_buffer_load")):
                self.kind = "smem"
                self.dst = R(ops[0])
                self.src = sum((R(o) for o in ops[1:]), [])
            elif mn.startswith(("s_cmp", "s_waitcnt", "s_barrier", "s_branch", "s_cbranch", "s_endpgm", "s_sleep", "s_setprio", "s_bitcmp")):
                self.src = sum((R(o) for o in ops), [])
            else:
                self.dst = R(ops[0])
                self.src = sum((R(o) for o in ops[1:]), [])
                if "saveexec" in mn:
                    self.dst += [("x", "exec")]
        else:
            raise ValueError("unknown instr " + text)


def required_gap(p, c):
    need = 0
    pd = set(p.dst)
    cs = set(c.src)
    cd = set(c.dst)
    cc = set(c.srcc)
    isv = p.kind in ("valu", "trans")
    if isv:
        vd = {r for r in pd if r[0] in "va"}
        sd = {r for r in pd if r[0] == "s"}
        if c.kind == "mfma" and (vd & (cs | cc)):
            need = max(need, 2)
        if c.kind == "mfma" and ("x", "exec") in pd:
            need = max(need, 4)
        if c.kind in ("vmem", "vmem_lds") and (sd & cs):
            need = max(need, 5)
        if c.kind in ("valu", "trans"):
            if sd & cs:
                need = max(need, 4 if c.mn.startswith(("v_readlane", "v_writelane")) else 2)
            if c.mn.startswith(("v_readlane", "v_readfirstlane")) and (vd & cs):
                need = max(need, 1)
            if ("permlane" in c.mn or "dpp" in c.mn) and (vd & cs):
                need = max(need, 2)
            if "dpp" in c.mn and ("x", "exec") in pd:
                need = max(need, 5)
            if ("x", "exec") in pd and c.mn.startswith(("v_readlane", "v_readfirstlane", "v_writelane")) or (
                ("x", "exec") in pd and "permlane" in c.mn
            ):
                need = max(need, 4)
            if p.kind == "trans" and c.kind == "valu" and (vd & cs):
                need = max(need, 1)
            if p.kind == "trans" and c.kind == "trans" and (vd & cs):
                need = max(need, 1)
        if c.kind == "salu" and (sd & cs):
            need = max(need, 1)
        if p.kind == "trans" and c.kind in ("vmem", "ds", "vmem_lds") and (vd & cs):
            need = max(need, 1)
    if p.mn.startswith("v_dot"):
        vd = {r for r in pd if r[0] in "va"}
        if c.mn == p.mn:
            ab = set(sum((regs_of(o.strip().split()[0]) for o in c.text.split(None, 1)[1].split(",")[1:3]), []))
            if vd & ab:
                need = max(need, 3)
        elif vd & (cs | cd | cc):
            need = max(need, 3)
    if p.kind == "salu":
        if ("s", "m0") in pd and c.kind == "vmem_lds":
            need = max(need, 1)
    if p.kind == "mfma":
        big = 12 if p.passes == 8 else 8
        if c.kind == "mfma":
            if pd & cs:
                need = max(need, big)
            if pd & cc:
                if not (list(p.dst) == list(c.srcc) and p.passes == c.passes):
                    need = max(need, 10 if p.passes == 8 else 6)
            elif pd & cd:
                need = max(need, 10 if p.passes == 8 else 6)
        elif c.kind in ("valu", "trans", "vmem", "ds", "vmem_lds"):
            if pd & (cs | cd):
                need = max(need, big)
            if c.kind in ("valu", "trans") and (set(p.srcc) & cd):
                need = max(need, 7 if p.passes == 8 else 3)
    if p.kind == "vmem" and p.wide_store_data:
        if set(p.wide_store_data) & cd:
            need = max(need, 2 if c.kind in ("valu", "trans", "mfma") else 1)
    return need


class Asm:
    def __init__(self):
        self.out = []
        self.hist = []
        self.vm = []
        self.lg = []
        self.nlabel = 0

    def raw(self, s):
        self.out.append(s)

    def label(self, name):
        self.out.append(name + ":")

    def newlabel(self, p="L"):
        self.nlabel += 1
        return f"{p}_{self.nlabel}"

    def _pad(self, ins):
        dist = 0
        need = 0
        for p in reversed(self.hist):
            g = required_gap(p, ins)
            if g > dist:
                need = max(need, g - dist)
            dist += p.states
            if dist >= 20:
                break
        while need > 0:
            n = min(need, 16)
            nop = Ins(f"s_nop {n-1}")
            self.out.append(nop)
            self.hist.append(nop)
            need -= n

    def __call__(self, text, tag=None):
        for line in text.split("\n"):
            line = line.strip()
            if not line:
                continue
            ins = Ins(line)
            self._pad(ins)
            self.out.append(ins)
            self.hist.append(ins)
            if len(self.hist) > 40:
                self.hist = self.hist[-30:]
            if ins.kind in ("vmem", "vmem_lds"):
                self.vm.append(tag)
            elif ins.kind == "ds":
                self.lg.append(tag)
            elif ins.kind == "smem":
                self.lg.append("__smem__")
            elif ins.mn == "s_waitcnt":
                m = re.search(r"vmcnt\((\d+)\)", line)
                if m:
                    n = int(m.group(1))
                    self.vm = self.vm[len(self.vm) - n:] if n < len(self.vm) else self.vm
                    if n == 0:
                        self.vm = []
                m = re.search(r"lgkmcnt\((\d+)\)", line)
                if m:
                    n = int(m.group(1))
                    self.lg = self.lg[len(self.lg) - n:] if n < len(self.lg) else self.lg
                    if n == 0:
                        self.lg = []

    def _count_after(self, q, tag):
        idx = [i for i, t in enumerate(q) if t == tag or (isinstance(tag, (list, set)) and t in tag)]
        if not idx:
            return None
        return len(q) - 1 - idx[-1]

    def wait_vm(self, tag, force=False):
        n = self._count_after(self.vm, tag)
        if n is None:
            return
        assert n <= 63, f"vmcnt {n} too large"
        self(f"s_waitcnt vmcnt({n})")

    def wait_lg(self, tag):
        n = self._count_after(self.lg, tag)
        if n is None:
            return
        if "__smem__" in self.lg:
            n = 0
        n = min(n, 15)
        self(f"s_waitcnt lgkmcnt({n})")

    STAMPS = False

    def stamp(self, k, real=False):
        if not Asm.STAMPS:
            return
        op = "s_memrealtime" if real else "s_memtime"
        save = list(self.lg)
        self(f"{op} s[{64+2*k}:{65+2*k}]")
        self("s_waitcnt lgkmcnt(0)")
        self.lg = save

    def stamp_dump(self, kid, n=16, vtmp=8):
        if not Asm.STAMPS:
            return
        from layout import DIAG
        self("s_mov_b64 exec, -1")
        self(f"s_lshl_b32 s60, s51, 3")
        self(f"s_add_u32 s60, s60, {kid}")
        self("s_lshl_b32 s60, s60, 8")
        self("s_add_u32 s60, s60, s2")
        self("s_lshl_b32 s60, s60, 3")
        self("s_add_u32 s60, s60, s3")
        self("s_lshl_b32 s60, s60, 6")
        self(f"s_add_u32 s60, s60, {DIAG}")
        self(f"v_mov_b32 v{vtmp+4}, 0")
        for g in range(n // 4):
            for r in range(4):
                self(f"v_mov_b32 v{vtmp+r}, s{64+2*(g*4+r)}")
            self(f"buffer_store_dwordx4 v[{vtmp}:{vtmp+3}], v{vtmp+4}, s[4:7], s60 offen offset:{g*16}")
            self("s_nop 2")

    def text(self):
        L = []
        for o in self.out:
            L.append(o if isinstance(o, str) else "  " + o.text)
        return "\n".join(L) + "\n"

    def check_backedge(self, label):
        idx = None
        for i, o in enumerate(self.out):
            if isinstance(o, str) and o == label + ":":
                idx = i
        assert idx is not None
        head = [o for o in self.out[idx:] if not isinstance(o, str)][:24]
        tail = [o for o in self.out if not isinstance(o, str)][-24:]
        for hi, c in enumerate(head):
            dist = sum(x.states for x in head[:hi])
            for p in reversed(tail):
                g = required_gap(p, c)
                if g > dist:
                    raise AssertionError(f"back-edge hazard: {p.text} -> {c.text} need {g} have {dist}")
                dist += p.states
                if dist >= 20:
                    break


def kernel_header(name):
    return f".globl {name}\n.p2align 8\n.type {name},@function\n{name}:"


def kernel_desc(name, vgpr, agpr, sgpr=102):
    acc_off = (vgpr + 3) // 4 * 4
    nfv = acc_off + agpr if agpr else vgpr
    return (
        f".p2align 6\n.amdhsa_kernel {name}\n  .amdhsa_next_free_vgpr {nfv}\n  .amdhsa_next_free_sgpr {sgpr}\n"
        f"  .amdhsa_accum_offset {acc_off}\n  .amdhsa_group_segment_fixed_size 0\n  .amdhsa_kernarg_size 80\n"
        "  .amdhsa_user_sgpr_count 2\n  .amdhsa_user_sgpr_kernarg_segment_ptr 1\n  .amdhsa_system_sgpr_workgroup_id_x 1\n"
        "  .amdhsa_float_denorm_mode_32 3\n"
        ".end_amdhsa_kernel"
    )


def loop_checked(a, body, step=2):
    n0 = len(a.out)
    body(a, 0)
    w1 = [o for o in a.out[n0:] if not isinstance(o, str) and o.mn == "s_waitcnt"]
    b = Asm()
    b.vm = list(a.vm)
    b.lg = list(a.lg)
    b.hist = list(a.hist)
    for it in (1, 2):
        n1 = len(b.out)
        body(b, it * step)
        w2 = [o.text for o in b.out[n1:] if not isinstance(o, str) and o.mn == "s_waitcnt"]
        assert len(w1) == len(w2), (len(w1), len(w2))
        for x, y in zip(w1, w2):
            for key in ("vmcnt", "lgkmcnt"):
                mx = re.search(key + r"\((\d+)\)", x.text)
                my = re.search(key + r"\((\d+)\)", y)
                assert (mx is None) == (my is None), (x.text, y)
                if mx and int(mx.group(1)) > int(my.group(1)):
                    x.text = x.text.replace(mx.group(0), my.group(0))
```

```python
from asmlib import *
from layout import *
from gen_p0 import prologue, mksrd, f2u, sdivmod
from gen_k1 import entries, rnd, setexec, lanemask, stats_combine, LOG2E
import math, os
INIT_ISSUE = int(os.environ.get('INIT_ISSUE', '20'))
ROTMASK = int(os.environ.get('ROTMASK', '0'))

SLOT = 36 * KB
B1_CS = 4 * SLOT
B1_LDS = B1_CS + 12 * KB
NWB = 6
AH = NWB - 1
SETS = (16, 48, 80, 112)
WB = 144
TMP = 172
CST = 176
STD = 184
MR = 216
GC = -2.0 * math.sqrt(2.0 / math.pi) * LOG2E


def xreg(ks, tl):
    if ks == 36:
        r = MR + tl * 4
        return f"v[{r}:{r+3}]"
    f = ks * 2 + tl
    if f < 64:
        return f"a[{f*4}:{f*4+3}]"
    r = 224 + (f - 64) * 4
    return f"v[{r}:{r+3}]"


def epilogue_list(X):
    L = []
    for tl in range(2):
        C0, C1, Dd = (f"v{CST+tl*3+i}" for i in range(3))
        for p in range(4):
            ga, gb = X + tl * 16 + 2 * p, X + tl * 16 + 2 * p + 1
            ua, ub = ga + 8, gb + 8
            ta, tb = TMP + (p & 1) * 2, TMP + (p & 1) * 2 + 1
            L += [
                f"v_mul_f32 v{ta}, v{ga}, v{ga}",
                f"v_mul_f32 v{tb}, v{gb}, v{gb}",
                f"v_fma_f32 v{ta}, v{ta}, {C1}, {C0}",
                f"v_fma_f32 v{tb}, v{tb}, {C1}, {C0}",
                f"v_mul_f32 v{ta}, v{ta}, v{ga}",
                f"v_mul_f32 v{tb}, v{tb}, v{gb}",
                f"v_exp_f32 v{ta}, v{ta}",
                f"v_exp_f32 v{tb}, v{tb}",
                f"v_mul_f32 v{ga}, v{ga}, v{ua}",
                f"v_mul_f32 v{gb}, v{gb}, v{ub}",
                f"v_fma_f32 v{ta}, v{ta}, {Dd}, {Dd}",
                f"v_fma_f32 v{tb}, v{tb}, {Dd}, {Dd}",
                f"v_rcp_f32 v{ta}, v{ta}",
                f"v_rcp_f32 v{tb}, v{tb}",
                f"v_mul_f32 v{ga}, v{ga}, v{ta}",
                f"v_mul_f32 v{gb}, v{gb}, v{tb}",
                f"v_cvt_pk_bf16_f32 v{STD+tl*4+p}, v{ga}, v{gb}",
            ]
        L.append((f"buffer_store_dwordx4 v[{STD+tl*4}:{STD+tl*4+3}], v1, s[4:7], s{44+tl} offen sc1", "st"))
        L.append(f"s_add_u32 s{44+tl}, s{44+tl}, 1024")
    return L


def dma_list(tag):
    L = []
    for i in range(9):
        t = f"buffer_load_dwordx4 v1, s[4:7], s48 offen offset:{(i&3)*1024} lds"
        if i in (3, 7):
            t += "\ns_add_u32 s48, s48, 4096\ns_add_u32 m0, m0, 4096"
        L.append((t, tag))
    return L


def dma_setup():
    return [
        "s_cmp_gt_i32 s42, 0\ns_cselect_b32 s48, s40, s49\ns_mov_b32 m0, s41",
        f"s_add_u32 s40, s40, {SLOT}\ns_sub_u32 s42, s42, 1\ns_add_u32 s41, s41, {SLOT}",
        f"s_cmp_ge_u32 s41, {4*SLOT}\ns_cselect_b32 s47, {4*SLOT}, 0\ns_sub_u32 s41, s41, s47",
    ]


def slot_adv():
    return [
        f"s_add_u32 s43, s43, {SLOT}\ns_cmp_ge_u32 s43, {4*SLOT}\ns_cselect_b32 s47, {4*SLOT}, 0\ns_sub_u32 s43, s43, s47",
    ]


def emit(a, it):
    if callable(it):
        it(a)
    elif isinstance(it, tuple):
        lines = it[0].split("\n")
        a(lines[0], tag=it[1])
        for l in lines[1:]:
            a(l)
    else:
        a(it)


def spread(items, g0, g1, fl):
    n = len(items)
    for i, it in enumerate(items):
        g = g0 + (i * (g1 - g0)) // n
        fl.setdefault(g, []).append(it)


class Step:
    def __init__(self, tag, rd, buf, mf, before_read=None, before_use=None):
        self.tag, self.rd, self.buf, self.mf = tag, rd, buf, mf
        self.before_read, self.before_use = before_read, before_use


def run_steps(a, steps, nxt, fillers):
    allst = steps + nxt
    g = 0
    for n, st in enumerate(steps):
        m = n + AH
        if m < len(allst):
            issue_read(a, allst[m])
        if st.before_use:
            st.before_use(a)
        a.wait_lg(st.tag)
        for mf in st.mf:
            a(mf)
            for it in fillers.get(g, []):
                emit(a, it)
            g += 1


def issue_read(a, st):
    if st.before_read:
        st.before_read(a)
    w = st.buf
    lines = st.rd.split("\n")
    a(f"ds_read_b128 v[{w}:{w+3}], {lines[0]}", tag=st.tag)
    for l in lines[1:]:
        a(l)


def mf2(X, w, ks, first):
    out = []
    for tl in range(2):
        c = X + tl * 16
        cin = "0" if first else f"v[{c}:{c+15}]"
        out.append(f"v_mfma_f32_32x32x16_bf16 v[{c}:{c+15}], v[{w}:{w+3}], {xreg(ks, tl)}, {cin}")
    return out


def unit_steps(uid, X):
    def sync(a):
        a.wait_vm(("w", uid))
        a("s_barrier")
        a("v_add_u32 v2, s43, v1")

    st = []
    for n in range(36):
        w = WB + (n % NWB) * 4
        st.append(Step((uid, n), f"v2 offset:{n*1024}", w, mf2(X, w, n, n == 0), before_read=sync if n == 0 else None))
    w = WB + NWB * 4
    st.append(Step((uid, 36), "v3\nv_add_u32 v3, 0x400, v3", w, mf2(X, w, 36, False)))
    return st


def gen_b1(a):
    names = entries(a, "b1", "B1_main")
    prologue(a, 256, "B1_end")
    a.stamp(0)
    a.stamp(8, True)
    a("v_lshlrev_b32 v1, 4, v0")
    a("s_and_b32 s36, s2, 7")
    a("s_lshr_b32 s37, s2, 3")
    a("s_and_b32 s38, s36, 1")
    a("s_lshl_b32 s38, s38, 2")
    a("s_and_b32 s39, s37, 3")
    a("s_add_u32 s38, s38, s39")
    a("s_lshr_b32 s46, s37, 2")
    a("s_add_u32 s57, s39, s46")
    a(f"s_and_b32 s57, s57, {ROTMASK}")
    a("s_lshr_b32 s39, s36, 1")
    a("s_lshl_b32 s39, s39, 3")
    a("s_add_u32 s39, s39, s46")
    a(f"s_mov_b32 s49, {OOB}")
    a("s_lshl_b32 s52, s38, 3")
    a("s_lshl_b32 s53, s3, 1")
    a("s_add_u32 s52, s52, s53")
    a("s_lshl_b32 s46, s52, 11")
    a(f"s_add_u32 s46, s46, {ST1}")
    a("s_add_u32 s46, s46, s50")
    a("v_and_b32 v4, 31, v0")
    a("v_lshlrev_b32 v4, 6, v4")
    SR = SETS[3]
    a("s_mov_b32 s53, s46")
    statl = []
    for tl in range(2):
        for i in range(4):
            r = SR + tl * 16 + i * 4
            statl.append((f"buffer_load_dwordx4 v[{r}:{r+3}], v4, s[4:7], s53 offen offset:{tl*2048+i*16}", "stat"))
    a(f"s_mul_i32 s58, s39, {9*SLOT}")
    a(f"s_add_u32 s58, s58, {WGU}")
    a(f"s_mul_i32 s59, s3, {SLOT}")
    a(f"s_add_u32 s40, s58, {4*SLOT}")
    a("s_add_u32 s58, s58, s59")
    a("s_mul_i32 s62, s52, 36864")
    a(f"s_add_u32 s62, s62, {X1}")
    a("s_add_u32 s62, s62, s50")
    pend = []
    for g in range(4):
        pend.append(
            f"s_add_u32 s63, s57, {g}\ns_and_b32 s63, s63, 3\ns_mul_i32 s63, s63, {9*KB}\ns_add_u32 s48, s58, s63\n"
            f"s_add_u32 m0, s59, {g*9*KB}\ns_add_u32 s54, s62, s63\ns_add_u32 s55, s54, 36864"
        )
        pend += dma_list(("wa", g))
        for j in range(9):
            i = g * 9 + j
            for tl in range(2):
                t = f"buffer_load_dwordx4 {xreg(i, tl)}, v1, s[4:7], s{54+tl} offen offset:{(j&3)*1024}"
                if tl == 1 and (j & 3) == 3:
                    t += "\ns_add_u32 s54, s54, 4096\ns_add_u32 s55, s55, 4096"
                pend.append((t, ("x", i)))
        if g == 2:
            pend += statl
            pend.append(
                f"s_mul_i32 s48, s39, {9*KB}\ns_mul_i32 s47, s3, {3*KB}\ns_add_u32 s48, s48, s47\ns_add_u32 s48, s48, {CSGU}\n"
                f"s_add_u32 m0, s47, {B1_CS}"
            )
            for i in range(3):
                pend.append((f"buffer_load_dwordx4 v1, s[4:7], s48 offen offset:{i*1024} lds", "cs"))

    def issue(nv):
        while pend and nv > 0 and len(a.vm) < 60:
            it = pend.pop(0)
            emit(a, it)
            if isinstance(it, tuple):
                nv -= 1

    issue(INIT_ISSUE)
    a(f"s_mul_i32 s44, s52, {576*512}")
    a(f"s_mul_i32 s46, s39, {9*KB}")
    a("s_add_u32 s44, s44, s46")
    a(f"s_add_u32 s44, s44, {HB}")
    a("s_add_u32 s44, s44, s50")
    a(f"s_add_u32 s45, s44, {576*512}")
    a(f"v_add_u32 v2, {2*SLOT}, v1")
    a(f"v_add_u32 v3, {B1_CS}, v1")
    a(f"s_mov_b32 s43, {3*SLOT}")
    a("s_add_u32 s47, s57, s3")
    a("s_and_b32 s47, s47, 3")
    a(f"s_mul_i32 s47, s47, {9*KB}")
    a("s_add_u32 s40, s40, s47")
    a(f"s_mul_i32 s41, s3, {9*KB}")
    a("s_mov_b32 s42, 5")
    def do_stats(tl):
        def f(a):
            assert not any(isinstance(it, tuple) and it[1] == "stat" for it in pend)
            a.wait_vm("stat")
            stats_combine(a, SR + tl * 16, [80, 64] * 4, "v8", "v5", f"v{MR+tl*4}", "v6")
            for r in range(1, 4):
                a(f"v_mov_b32 v{MR+tl*4+r}, v{MR+tl*4}")
            C0, C1, Dd = (f"v{CST+tl*3+i}" for i in range(3))
            a(f"v_mul_f32 {Dd}, v6, v6")
            a("v_rcp_f32 v6, v6")
            a(f"v_mul_f32 {C0}, {f2u(GC)}, v6")
            a("v_mul_f32 v5, v6, v6")
            a(f"v_mul_f32 v5, {f2u(0.044715)}, v5")
            a(f"v_mul_f32 {C1}, v5, {C0}")
        return f

    sa = Asm()
    for tl in range(2):
        save = list(pend)
        pend.clear()
        do_stats(tl)(sa)
        pend.extend(save)
    stat_code = [o.text for o in sa.out if o.mn != "s_nop"]
    a.stamp(1)
    stA = []
    n = 0
    for i in range(36):
        for u in range(3):
            w = WB + (n % NWB) * 4
            base, off = ("v1", "v7", "v2")[u], i * 1024
            br = bu = None
            if u == 0 and i % 9 == 0:
                def br(a, g=i // 9):
                    assert not any(isinstance(it, tuple) and it[1] == ("wa", g) for it in pend)
                    a.wait_vm(("wa", g))
                    a("s_barrier")
            if u == 0:
                def bu(a, i=i):
                    assert not any(isinstance(it, tuple) and it[1] == ("x", i) for it in pend)
                    a.wait_vm(("x", i))
            stA.append(Step(("A", n), f"{base} offset:{off}", w, mf2(SETS[u], w, i, i == 0), br, bu))
            n += 1
    for u in range(3):
        w = WB + (n % NWB) * 4
        stA.append(Step(("A", n), "v3\nv_add_u32 v3, 0x400, v3", w, mf2(SETS[u], w, 36, False)))
        n += 1
    a(f"v_add_u32 v7, {SLOT}, v1")
    u3 = unit_steps(3, SETS[3])
    spare = [WB + NWB * 4, TMP, STD]
    for k in range(3):
        st = stA[108 + k]
        st.buf = spare[k]
        st.mf = mf2(SETS[k], spare[k], 36, False)
    def sync3(a):
        a("s_barrier")
        a("v_add_u32 v2, s43, v1")
    u3[0].before_read = sync3
    for k in range(AH):
        issue_read(a, stA[k])
    a.stamp(2)
    flA = {}
    for gidx in range(0, 216):
        if gidx < 40 or gidx % 2 == 0:
            flA[gidx] = [lambda a: issue(1)]
    flA.setdefault(170, []).append(lambda a: a.wait_vm("stat"))
    spread(stat_code, 171, 212, flA)
    run_steps(a, stA, u3, flA)
    assert not pend
    a.stamp(3)
    u4 = unit_steps(4, SETS[0])
    fl = {}
    spread(slot_adv() + dma_setup() + dma_list(("w", 4)), 0, 30, fl)
    fl.setdefault(12, []).append("s_barrier")
    spread(dma_setup() + dma_list(("w", 5)), 30, 62, fl)
    spread(epilogue_list(SETS[0]) + epilogue_list(SETS[1]), 4, 72, fl)
    run_steps(a, u3, u4, fl)
    u5 = unit_steps(5, SETS[1])
    fl = {}
    spread(slot_adv() + dma_setup() + dma_list(("w", 6)), 0, 60, fl)
    spread(epilogue_list(SETS[2]) + epilogue_list(SETS[3]), 2, 72, fl)
    run_steps(a, u4, u5, fl)
    a.stamp(4)
    a("s_mov_b32 s56, 0")
    a.label("B1_loop")

    def body(a, base):
        for k in range(2):
            uid = 5 + base + k
            fl = {}
            spread(slot_adv() + dma_setup() + dma_list(("w", uid + 2)), 0, 60, fl)
            spread(epilogue_list(SETS[k]), 4, 70, fl)
            run_steps(a, unit_steps(uid, SETS[1 - k]), unit_steps(uid + 1, SETS[k]), fl)

    loop_checked(a, body)
    a("s_add_u32 s56, s56, 1")
    a("s_cmp_lt_u32 s56, 2")
    a("s_cbranch_scc1 B1_loop")
    a.check_backedge("B1_loop")
    a.stamp(5)
    for it in epilogue_list(SETS[0]):
        emit(a, it)
    if Asm.STAMPS:
        a("s_waitcnt vmcnt(0)")
    a.stamp(6)
    a.stamp(9, True)
    a.stamp_dump(2)
    a.label("B1_end")
    a("s_endpgm")
    return [dict(name=n, grid=256, block=256, lds=B1_LDS, vgpr=256, agpr=256) for n in names]
```

```python
from asmlib import *
from layout import *
from gen_p0 import prologue, mksrd, f2u, sdivmod
from gen_k1 import entries, rnd, setexec, lanemask
from gen_k2 import chan_q, finalize
from gen_b1 import dma_list, dma_setup, emit, spread, slot_adv, SLOT, Step, run_steps, issue_read, AH, NWB, ROTMASK, INIT_ISSUE

OWN = 4 * SLOT
B2_LDS = OWN + 16 * KB
WB = 80
SETS = (16, 24)
XSET = 32
assert UA == 4


def hreg(ks, u):
    f = ks * 2 + u
    if f < 64:
        return f"a[{f*4}:{f*4+3}]"
    r = 224 + (f - 64) * 4
    return f"v[{r}:{r+3}]"


def store_list(X, lds=True):
    L = []
    for u in range(2):
        L.append((f"buffer_store_dwordx4 v[{X+u*4}:{X+u*4+3}], v6, s[4:7], s44 offen offset:{u*1024} sc1", "st"))
    L.append("s_add_u32 s44, s44, 8192")
    L.append(("s_mov_b64 exec, s[58:59]", None))
    L[-1] = lambda a: (a("s_mov_b64 exec, s[58:59]"), a(f"ds_write_b128 v7, v[{X}:{X+3}]", tag="own"),
                       a(f"ds_write_b128 v7, v[{X+4}:{X+7}] offset:1024", tag="own"), a("s_mov_b64 exec, -1"), a("v_add_u32 v7, 0x800, v7"))
    return L


def mf2(X, w, ks, first):
    out = []
    for u in range(2):
        c = X + u * 4
        cin = "0" if first else f"v[{c}:{c+3}]"
        out.append(f"v_mfma_f32_16x16x32_bf16 v[{c}:{c+3}], v[{w}:{w+3}], {hreg(ks, u)}, {cin}")
    return out


def chunk_steps(cid, info, bu=None):
    def sync(a):
        a.wait_vm(("w", cid))
        a("s_barrier")
        a("v_add_u32 v2, s43, v1")
        for it in slot_adv():
            emit(a, it)

    st = []
    for n in range(36):
        w = WB + (n % NWB) * 4
        ks, X, first = info(n)
        st.append(Step((cid, n), f"v2 offset:{n*1024}", w, mf2(X, w, ks, first), sync if n == 0 else None, bu(n) if bu else None))
    return st


def gen_b2(a):
    names = entries(a, "b2", "B2_main")
    prologue(a, 256, "B2_end")
    a.stamp(0)
    a.stamp(8, True)
    a("v_lshlrev_b32 v1, 4, v0")
    a("s_and_b32 s36, s2, 7")
    a("s_lshr_b32 s37, s2, 3")
    a("s_and_b32 s38, s36, 1")
    a("s_lshl_b32 s38, s38, 3")
    a("s_and_b32 s39, s37, 7")
    a("s_add_u32 s38, s38, s39")
    a("s_lshr_b32 s46, s37, 3")
    a("s_add_u32 s60, s39, s46")
    a(f"s_and_b32 s60, s60, {ROTMASK}")
    a("s_mov_b32 s39, s46")
    a("s_lshr_b32 s57, s36, 1")
    a(f"s_mov_b32 s49, {OOB}")
    a("s_lshl_b32 s61, s57, 2")
    a("s_add_u32 s61, s61, s39")
    a(f"s_mul_i32 s61, s61, {9*SLOT}")
    a(f"s_add_u32 s61, s61, {WD}")
    a(f"s_mul_i32 s41, s3, {9*KB}")
    a("s_add_u32 s47, s60, s3")
    a("s_and_b32 s47, s47, 3")
    a(f"s_mul_i32 s47, s47, {9*KB}")
    a(f"s_add_u32 s40, s61, {4*SLOT}")
    a("s_add_u32 s40, s40, s47")
    a("s_add_u32 s61, s61, s41")
    a("s_mov_b32 s42, 5")
    a("s_lshl_b32 s52, s38, 2")
    a("s_add_u32 s52, s52, s3")
    a(f"s_mul_i32 s62, s52, {576*512}")
    a(f"s_mul_i32 s46, s57, {144*512}")
    a("s_add_u32 s62, s62, s46")
    a(f"s_add_u32 s62, s62, {HB}")
    a("s_add_u32 s62, s62, s50")
    a("v_and_b32 v4, 15, v0")
    a("v_lshrrev_b32 v5, 4, v0")
    a("v_lshlrev_b32 v4, 4, v4")
    a("v_lshl_add_u32 v4, v5, 9, v4")
    pend = []
    for g in range(4):
        pend.append(
            f"s_add_u32 s63, s60, {g}\ns_and_b32 s63, s63, 3\ns_mul_i32 s48, s63, {SLOT}\ns_add_u32 s48, s48, s61\n"
            f"s_add_u32 m0, s41, {g*SLOT}\ns_mul_i32 s54, s63, {9*2048}\ns_add_u32 s54, s54, s62"
        )
        pend += dma_list(("w", g))
        for j in range(9):
            i = g * 9 + j
            for u in range(2):
                t = f"buffer_load_dwordx4 {hreg(i, u)}, v4, s[4:7], s54 offen offset:{(j&1)*2048+u*256}"
                if u == 1 and (j & 1):
                    t += "\ns_add_u32 s54, s54, 4096"
                pend.append((t, ("x", i)))

    def issue(nv):
        while pend and nv > 0 and len(a.vm) < 60:
            it = pend.pop(0)
            emit(a, it)
            if isinstance(it, tuple):
                nv -= 1

    issue(INIT_ISSUE)
    a("s_lshl_b32 s45, s38, 2")
    a("s_add_u32 s45, s45, s39")
    a(f"s_mul_i32 s55, s45, {9*8192}")
    a(f"s_add_u32 s55, s55, {PART}")
    a("s_add_u32 s55, s55, s50")
    a(f"s_mul_i32 s44, s57, {64*9*8192}")
    a("s_add_u32 s44, s44, s55")
    a("s_lshl_b32 s46, s3, 11")
    a("s_add_u32 s44, s44, s46")
    a("s_cmp_eq_u32 s3, s57")
    a("s_cselect_b64 s[58:59], -1, 0")
    a("s_cselect_b32 s46, s49, 0")
    a("v_add_u32 v6, s46, v1")
    a(f"v_add_u32 v7, {OWN}, v1")
    a("s_mov_b32 s43, 0")

    def bu(c):
        def f(n):
            if n % 4:
                return None
            i = c * 9 + n // 4

            def g(a):
                assert not any(isinstance(it, tuple) and it[1] == ("x", i) for it in pend)
                a.wait_vm(("x", i))
            return g
        return f

    chA = [chunk_steps(c, lambda n, c=c: (c * 9 + n // 4, XSET + (n % 4) * 8, c == 0 and n < 4), bu(c)) for c in range(4)]
    u4 = chunk_steps(4, lambda n: (n, SETS[0], n == 0))
    for k in range(AH):
        issue_read(a, chA[0][k])
    a.stamp(2)
    for c in range(4):
        fl = {}
        for gidx in range(0, 72):
            if gidx % 2 == 0 or (c == 0 and gidx < 40):
                fl[gidx] = [lambda a: issue(1)]
        if c >= 2:
            pend.extend(dma_setup() + dma_list(("w", c + 2)))
        run_steps(a, chA[c], chA[c + 1] if c < 3 else u4, fl)
    assert not pend
    a.stamp(3)
    fl = {}
    spread(sum((store_list(XSET + u * 8) for u in range(4)), []), 4, 60, fl)
    spread(dma_setup() + dma_list(("w", 6)), 0, 60, fl)
    run_steps(a, u4, chunk_steps(5, lambda n: (n, SETS[1], n == 0)), fl)
    a("s_mov_b32 s56, 0")
    a.label("B2_loop")

    def body(a, base):
        for k in range(2):
            cid = 5 + base + k
            fl = {}
            spread(store_list(SETS[k]), 6, 30, fl)
            spread(dma_setup() + dma_list(("w", cid + 2)), 0, 60, fl)
            X, Y = SETS[1 - k], SETS[k]
            run_steps(a, chunk_steps(cid, lambda n: (n, X, n == 0)), chunk_steps(cid + 1, lambda n: (n, Y, n == 0)), fl)

    loop_checked(a, body)
    a("s_add_u32 s56, s56, 1")
    a("s_cmp_lt_u32 s56, 2")
    a("s_cbranch_scc1 B2_loop")
    a.check_backedge("B2_loop")
    a.stamp(4)
    a.lg = []
    for it in store_list(SETS[0])[:3]:
        emit(a, it)
    a("s_lshl_b32 s38, s38, 2")
    a("s_add_u32 s38, s38, s57")
    fin = finalize(a, "B2", X1, None)
    fin.setup()
    a("s_waitcnt vmcnt(0) lgkmcnt(0)")
    a("s_barrier")
    a(f"v_mov_b32 v7, v1")
    a("s_mov_b64 exec, s[58:59]")
    a(f"ds_write_b128 v7, v[{SETS[0]}:{SETS[0]+3}]")
    a(f"ds_write_b128 v7, v[{SETS[0]+4}:{SETS[0]+7}] offset:1024")
    a("s_mov_b64 exec, -1")
    a.stamp(5)
    a("s_lshl_b32 s46, s45, 6")
    a(f"s_add_u32 s46, s46, {KV+FLG}")
    a("s_add_u32 s46, s46, s50")
    a("s_cmp_lg_u32 s3, 0")
    a("s_cbranch_scc1 B2_wait")
    a("s_lshl_b32 s47, s57, 2")
    a("v_mov_b32 v8, s47")
    a("v_mov_b32 v9, 1")
    a("v_mov_b32 v10, 0")
    setexec(a, 1)
    a("buffer_store_dword v9, v8, s[4:7], s46 offen sc1")
    a("s_mov_b32 s47, 0")
    a.label("B2_poll")
    a("buffer_load_dwordx4 v[12:15], v10, s[4:7], s46 offen sc1")
    a("s_add_u32 s47, s47, 1")
    a("s_waitcnt vmcnt(0)")
    a("v_and_b32 v12, v12, v13")
    a("v_and_b32 v14, v14, v15")
    a("v_and_b32 v12, v12, v14")
    a("v_readfirstlane_b32 s48, v12")
    a("s_cmp_gt_u32 s47, 0x40000")
    a("s_cbranch_scc1 B2_polled")
    a("s_cmp_eq_u32 s48, 1")
    a("s_cbranch_scc0 B2_poll")
    a.label("B2_polled")
    a("s_mov_b64 exec, -1")
    a.label("B2_wait")
    a("s_waitcnt lgkmcnt(0)")
    a("s_barrier")
    a.stamp(1)
    a("s_mul_i32 s46, s44, 40960")
    a("s_lshl_b32 s47, s57, 11")
    a("s_add_u32 s46, s46, s47")
    a("s_lshl_b32 s47, s43, 10")
    a("s_add_u32 s46, s46, s47")
    a("s_add_u32 s55, s55, s46")
    for k in range(1, 4):
        a(f"s_add_u32 s47, s57, {k}")
        a("s_and_b32 s47, s47, 3")
        a(f"s_mul_i32 s47, s47, {64*9*8192}")
        a(f"s_add_u32 s{60+k}, s55, s47")
    a("s_mul_i32 s47, s44, 10240")
    a("s_lshl_b32 s48, s43, 10")
    a("s_add_u32 s47, s47, s48")
    a(f"s_add_u32 s47, s47, {OWN}")
    a("v_add_u32 v8, s47, v1")
    a("s_add_u32 s47, s47, 6144")
    a("s_cmp_eq_u32 s44, 0")
    a("s_cselect_b32 s47, s47, s48")
    a("v_add_u32 v9, s47, v1")

    def load(i, PR):
        for k in range(1, 4):
            r = PR + (i * 4 + k) * 4
            a(f"buffer_load_dwordx4 v[{r}:{r+3}], v1, s[4:7], s{60+k} offen sc1", tag=("p", i))
            a(f"s_add_u32 s{60+k}, s{60+k}, 8192")
        r = PR + i * 16
        if i == 3:
            a(f"ds_read_b128 v[{r}:{r+3}], v9", tag=("p", i))
        else:
            a(f"ds_read_b128 v[{r}:{r+3}], v8 offset:{i*2048}", tag=("p", i))

    fin.run(load)
    if Asm.STAMPS:
        a("s_waitcnt vmcnt(0)")
    a.stamp(6)
    a.stamp(9, True)
    a.stamp_dump(3, vtmp=24)
    a.label("B2_end")
    a("s_endpgm")
    return [dict(name=n, grid=256, block=256, lds=B2_LDS, vgpr=256, agpr=256) for n in names]
```

```python
from asmlib import *
from layout import *
from gen_p0 import prologue, mksrd, f2u, sdivmod
import math

LOG2E = math.log2(math.e)


def entries(a, base, common):
    names = []
    for l in range(2):
        nm = f"{base}{'ab'[l]}_kernel"
        a.raw(kernel_header(nm))
        a(f"s_mov_b32 s50, {L0 + l*LSTRIDE}")
        a(f"s_mov_b32 s51, {l}")
        if l == 0:
            a(f"s_branch {common}")
        names.append(nm)
    a.label(common)
    a.hist = []
    a.vm = []
    a.lg = []
    return names


def rnd(a, dst, src):
    a(f"v_cvt_pk_bf16_f32 {dst}, {src}, {src}")
    a(f"v_lshlrev_b32 {dst}, 16, {dst}")


def stats_combine(a, r0, counts, t0, t1, negm_pk, s_out):
    n = len(counts)
    N = sum(counts)
    assert N == D
    a(f"v_mul_f32 {t0}, {f2u(counts[0]/N)}, v{r0}")
    for j in range(1, n):
        a(f"v_fmamk_f32 {t0}, v{r0+2*j}, {f2u(counts[j]/N)}, {t0}")
    a(f"v_mov_b32 {t1}, v{r0+1}")
    for j in range(1, n):
        a(f"v_add_f32 {t1}, {t1}, v{r0+2*j+1}")
    for j in range(n):
        a(f"v_sub_f32 v{r0+2*j}, v{r0+2*j}, {t0}")
        a(f"v_mul_f32 v{r0+2*j}, v{r0+2*j}, v{r0+2*j}")
        a(f"v_fmamk_f32 {t1}, v{r0+2*j}, {f2u(float(counts[j]))}, {t1}")
    a(f"v_mul_f32 {t1}, {f2u(1.0/N)}, {t1}")
    a(f"v_cvt_pk_bf16_f32 {negm_pk}, -{t0}, -{t0}")
    rnd(a, t1, t1)
    a(f"v_add_f32 {t1}, {f2u(1e-5)}, {t1}")
    rnd(a, t1, t1)
    a(f"v_sqrt_f32 {t1}, {t1}")
    rnd(a, s_out, t1)


def phi_pair(a, x0, x1, r0, r1, e0, e1, dst, t0, t1):
    a(f"v_mul_f32 {t0}, {x0}, {e0}")
    a(f"v_mul_f32 {t1}, {x1}, {e1}")
    a(f"v_exp_f32 {t0}, {t0}")
    a(f"v_exp_f32 {t1}, {t1}")
    a(f"v_cmp_lt_f32 vcc, 0, {x0}")
    a(f"v_cmp_lt_f32 s[52:53], 0, {x1}")
    a(f"v_fma_f32 {x0}, {x0}, {r0}, 1.0")
    a(f"v_fma_f32 {x1}, {x1}, {r1}, 1.0")
    a(f"v_cndmask_b32 {x0}, {t0}, {x0}, vcc")
    a(f"v_cndmask_b32 {x1}, {t1}, {x1}, s[52:53]")
    a(f"v_add_f32 {x0}, {f2u(1e-6)}, {x0}")
    a(f"v_add_f32 {x1}, {f2u(1e-6)}, {x1}")
    a(f"v_cvt_pk_bf16_f32 {dst}, {x0}, {x1}")


def setexec(a, mask):
    a(f"s_mov_b32 exec_lo, 0x{mask & 0xffffffff:x}")
    a(f"s_mov_b32 exec_hi, 0x{mask >> 32:x}")


def lanemask(fn):
    m = 0
    for l in range(64):
        if fn(l & 15, l >> 4):
            m |= 1 << l
    return m


K1_OP = 136 * KB
K1_RS = K1_OP + 20 * KB
K1_LDS = K1_RS + 1024


def gen_k1(a):
    names = entries(a, "k1", "K1_main")
    prologue(a, 256, "K1_end")
    a.stamp(0)
    a.stamp(8, True)
    XR, MR, AC, WB = 16, 88, 92, 124
    RS = 180
    a("v_and_b32 v5, 15, v0")
    a("v_lshrrev_b32 v6, 4, v0")
    a("s_and_b32 s36, s2, 7")
    a("s_lshr_b32 s37, s2, 3")
    a("s_and_b32 s38, s36, 3")
    a("s_lshl_b32 s38, s38, 2")
    a("s_and_b32 s39, s37, 3")
    a("s_add_u32 s38, s38, s39")
    a("s_lshr_b32 s39, s36, 2")
    a("s_lshl_b32 s39, s39, 3")
    a("s_lshr_b32 s40, s37, 2")
    a("s_add_u32 s39, s39, s40")
    a("s_lshr_b32 s40, s3, 1")
    a("s_lshl_b32 s41, s38, 2")
    a("s_add_u32 s41, s41, s40")
    a("s_and_b32 s47, s3, 1")
    a(f"s_mul_i32 s43, s39, {133*KB}")
    a(f"s_add_u32 s43, s43, {WQKV}")
    a("s_lshl_b32 s44, s3, 10")
    a("v_lshl_add_u32 v8, v0, 4, s44")
    a("s_mov_b32 m0, s44")
    a("s_mul_i32 s45, s41, 36864")
    a("s_lshl_b32 s46, s47, 8")
    a("s_add_u32 s45, s45, s46")
    a(f"s_add_u32 s45, s45, {XA}")
    a("s_add_u32 s45, s45, s50")
    a("v_lshlrev_b32 v9, 4, v5")
    a("v_lshl_add_u32 v9, v6, 9, v9")
    a("s_lshl_b32 s42, s41, 11")
    a("s_lshl_b32 s46, s47, 10")
    a("s_add_u32 s42, s42, s46")
    a(f"s_add_u32 s42, s42, {STA}")
    a("s_add_u32 s42, s42, s50")
    a("v_lshlrev_b32 v7, 6, v5")
    chunks = [(0, 2), (2, 5), (5, 9), (9, 14), (14, 19)]
    pend = []
    rounds = 0
    for ci, (k0, k1) in enumerate(chunks):
        need = (k1 * 7 + 7) // 8
        while rounds < need:
            t = "buffer_load_dwordx4 v8, s[4:7], s43 offen lds"
            rounds += 1
            if rounds < 17:
                t += "\ns_add_u32 s43, s43, 8192\ns_add_u32 m0, m0, 8192"
            pend.append((t, ("w", ci)))
        for ks in range(k0, min(k1, 18)):
            r = XR + ks * 4
            t = f"buffer_load_dwordx4 v[{r}:{r+3}], v9, s[4:7], s45 offen offset:{(ks&1)*2048}"
            if ks & 1:
                t += "\ns_add_u32 s45, s45, 4096"
            pend.append((t, ("x", ks)))
        if ci == 2:
            for h in range(4):
                pend.append((f"buffer_load_dwordx4 v[{192+h*4}:{195+h*4}], v7, s[4:7], s42 offen offset:{h*16}", "stat"))

    def issue(n):
        while pend and n > 0:
            t, tag = pend.pop(0)
            lines = t.split("\n")
            a(lines[0], tag=tag)
            for l in lines[1:]:
                a(l)
            n -= 1

    issue(12)
    allm = (1 << 64) - 1
    par = [
        (2, 0, allm, 0, 0),
        (3, 1, allm, KVHEAD + 8, 0),
        (2, 4, lanemask(lambda i, q: i < 2), 64, 0),
        (3, 4, lanemask(lambda i, q: i in (2, 3)), 64 + KVHEAD, 0),
        (4, 0, lanemask(lambda i, q: q == 1), 12 * KVROW, 0),
        (4, 1, lanemask(lambda i, q: q == 2), 8 * KVROW + KVHEAD + 8, 0),
        (4, 4, lanemask(lambda i, q: (q == 1 and i < 2) or (q == 2 and i in (2, 3))), 12 * KVROW + 64, KVHEAD - 4 * KVROW),
    ]
    a("s_lshl_b32 s46, s3, 2")
    a(f"s_lshr_b32 s54, 0x{sum(p[0] << (4*i) for i, p in enumerate(par)):x}, s46")
    a("s_and_b32 s54, s54, 7")
    a("s_lshl_b32 s54, s54, 12")
    a(f"s_lshr_b32 s55, 0x{sum(p[1] << (4*i) for i, p in enumerate(par)):x}, s46")
    a("s_and_b32 s55, s55, 7")
    a("s_lshl_b32 s55, s55, 12")
    a("s_mov_b64 s[56:57], -1")
    a("s_mov_b32 s58, 0")
    a("s_mov_b32 s59, 0")
    for i, p in enumerate(par):
        if i == 0:
            continue
        a(f"s_cmp_eq_u32 s3, {i}")
        if p[2] != allm:
            a(f"s_cselect_b32 s56, 0x{p[2] & 0xffffffff:x}, s56")
            a(f"s_cselect_b32 s57, 0x{p[2] >> 32:x}, s57")
        a(f"s_cselect_b32 s58, {p[3]}, s58")
        if p[4]:
            a(f"s_cselect_b32 s59, {p[4]}, s59")
    a("v_lshlrev_b32 v14, 4, v0")
    a("v_add_u32 v15, 0x10000, v14")
    a("v_add_u32 v4, 0x20000, v14")
    sets = [(0, 1), (1, 1), (2, 1), (3, 1), (4, 1), (4, 0), (5, 0), (6, 0)]

    def reads(ks):
        st = ks & 1
        for t in range(7):
            off = (ks * 7 + t) * 1024
            base = ("v14", "v15", "v4")[off >> 16]
            r = WB + st * 28 + t * 4
            a(f"ds_read_b128 v[{r}:{r+3}], {base} offset:{off & 65535}", tag=("wr", ks, t))

    def do_stats():
        a.wait_vm("stat")
        stats_combine(a, 192, [80, 64] * 4, "v10", "v11", f"v{MR}", "v12")
        a("v_rcp_f32 v12, v12")
        for r in range(1, 4):
            a(f"v_mov_b32 v{MR+r}, v{MR}")
        a(f"v_mul_f32 v13, {f2u(LOG2E)}, v12")
        a("s_lshl_b32 s46, s3, 7")
        a(f"s_add_u32 s46, s46, {K1_RS}")
        a("v_lshl_add_u32 v10, v5, 2, s46")
        a("ds_write_b32 v10, v12", tag="rs")
        a("ds_write_b32 v10, v13 offset:64", tag="rs")
        a("v_lshl_add_u32 v10, v6, 4, s46")

    starts = {k0: ci for ci, (k0, k1) in enumerate(chunks)}
    a.wait_vm(("w", 0))
    a("s_barrier")
    a.stamp(1)
    reads(0)
    for ks in range(19):
        if ks + 1 < 19:
            if ks + 1 in starts:
                assert not any(t[1] == ("w", starts[ks + 1]) for t in pend)
                a.wait_vm(("w", starts[ks + 1]))
                a("s_barrier")
            reads(ks + 1)
        if ks < 18:
            assert not any(t[1] == ("x", ks) for t in pend)
            a.wait_vm(("x", ks))
        st = ks & 1
        for si, (t, tm) in enumerate(sets):
            a.wait_lg(("wr", ks, t))
            w = WB + st * 28 + t * 4
            x = XR + ks * 4 if ks < 18 else MR
            c = AC + si * 4
            cin = f"v[{c}:{c+3}]" if ks else "0"
            if tm:
                a(f"v_mfma_f32_16x16x32_bf16 v[{c}:{c+3}], v[{x}:{x+3}], v[{w}:{w+3}], {cin}")
            else:
                a(f"v_mfma_f32_16x16x32_bf16 v[{c}:{c+3}], v[{w}:{w+3}], v[{x}:{x+3}], {cin}")
            if si in (1, 4, 6):
                issue(1)
        if ks == 15:
            do_stats()
        if ks == 16:
            a.wait_lg("rs")
            a(f"ds_read_b128 v[{RS}:{RS+3}], v10", tag="rs2")
            a(f"ds_read_b128 v[{RS+4}:{RS+7}], v10 offset:64", tag="rs2")
    assert not pend
    a.stamp(2)
    OP = 16
    a.wait_lg("rs2")
    for t in (2, 3, 4):
        c = AC + t * 4
        d = OP + 2 * t if t < 4 else 30
        for h in range(2):
            a(f"v_mul_f32 v10, v{c+2*h}, v{RS+2*h}")
            a(f"v_mul_f32 v11, v{c+2*h+1}, v{RS+2*h+1}")
            a(f"v_cvt_pk_bf16_f32 v{d+h}, v10, v11")
    for t in (0, 1, 4):
        c = AC + t * 4
        for h in range(2):
            phi_pair(a, f"v{c+2*h}", f"v{c+2*h+1}", f"v{RS+2*h}", f"v{RS+2*h+1}", f"v{RS+4+2*h}", f"v{RS+5+2*h}", f"v{OP+2*t+h}", "v10", "v11")
    a("v_mov_b32 v10, 0x3f803f80")
    m_phi = lanemask(lambda i, q: i < 4)
    m_one = lanemask(lambda i, q: i in (6, 10))
    a(f"s_mov_b32 s52, 0x{m_phi & 0xffffffff:x}")
    a(f"s_mov_b32 s53, 0x{m_phi >> 32:x}")
    a(f"s_mov_b32 vcc_lo, 0x{m_one & 0xffffffff:x}")
    a(f"s_mov_b32 vcc_hi, 0x{m_one >> 32:x}")
    for r in range(2):
        a(f"v_cndmask_b32 v{OP+8+r}, v{30+r}, v{OP+8+r}, s[52:53]")
        a(f"v_cndmask_b32 v{OP+8+r}, v{OP+8+r}, v10, vcc")
    a("s_lshl_b32 s46, s40, 10")
    a("s_lshl_b32 s48, s47, 3")
    a("s_add_u32 s46, s46, s48")
    a(f"s_add_u32 s46, s46, {K1_OP}")
    a("v_add_u32 v10, s46, v14")
    for t in range(5):
        a(f"ds_write_b64 v10, v[{OP+2*t}:{OP+2*t+1}] offset:{t*4096}")
    a(f"s_mul_i32 s46, s39, {2*KVHEAD}")
    a(f"s_add_u32 s46, s46, {KV}")
    a("s_add_u32 s46, s46, s50")
    a("s_add_u32 s8, s34, s46")
    a("s_addc_u32 s9, s35, 0")
    a("s_and_b32 s9, s9, 0xffff")
    a(f"s_movk_i32 s10, {2*KVHEAD}")
    a("s_mov_b32 s11, 0x20000")
    a(f"v_mul_u32_u24 v11, {4*KVROW}, v6")
    a("v_lshl_add_u32 v11, v5, 2, v11")
    a("v_mov_b32 v2, s59")
    a("v_cmp_eq_u32 vcc, 2, v6")
    a("v_cndmask_b32 v2, 0, v2, vcc")
    a("v_add3_u32 v11, v11, v2, s58")
    a(f"v_add_u32 v2, {K1_OP}, v14")
    a("v_add_u32 v3, s55, v2")
    a("v_add_u32 v2, s54, v2")
    a("s_waitcnt lgkmcnt(0)")
    a("s_barrier")
    a.stamp(3)
    a("s_cmp_eq_u32 s3, 7")
    a("s_cbranch_scc1 K1_q")
    for g in range(4):
        a(f"ds_read_b128 v[{32+g*8}:{35+g*8}], v2 offset:{g*1024}", tag=("o", g))
        a(f"ds_read_b128 v[{36+g*8}:{39+g*8}], v3 offset:{g*1024}", tag=("o", g))
    for g in range(4):
        a.wait_lg(("o", g))
        a(f"v_mfma_f32_16x16x32_bf16 v[64:67], v[{32+g*8}:{35+g*8}], v[{36+g*8}:{39+g*8}], {'v[64:67]' if g else '0'}")
    a("s_mov_b64 exec, s[56:57]")
    for r in range(4):
        a(f"buffer_atomic_add_f32 v{64+r}, v11, s[8:11], 0 offen offset:{r*KVROW}")
    a("s_mov_b64 exec, -1")
    a.label("K1_q")
    a.stamp(4)
    a("s_lshl_b32 s46, s41, 4")
    a("s_add_u32 s46, s46, s39")
    a("s_mul_i32 s46, s46, 2560")
    a("s_lshl_b32 s48, s47, 8")
    a("s_add_u32 s46, s46, s48")
    a(f"s_add_u32 s46, s46, {PQ}")
    a("s_add_u32 s46, s46, s50")
    a("v_lshrrev_b32 v7, 1, v6")
    a("v_lshlrev_b32 v7, 9, v7")
    a("v_lshl_add_u32 v7, v5, 4, v7")
    a("v_and_b32 v8, 1, v6")
    a("v_lshl_add_u32 v7, v8, 3, v7")
    a("v_xor_b32 v8, 8, v7")
    for si in (6, 7, 5):
        c = AC + si * 4
        d = 68 + (si - 5) * 2
        for h in range(2):
            phi_pair(a, f"v{c+2*h}", f"v{c+2*h+1}", "v12", "v12", "v13", "v13", f"v{d+h}", "v10", "v11")
        if si != 5:
            a(f"buffer_store_dwordx2 v[{d}:{d+1}], v7, s[4:7], s46 offen offset:{(si-6)*1024} sc1")
        else:
            setexec(a, lanemask(lambda i, q: q >= 2))
            a(f"buffer_store_dwordx2 v[{d}:{d+1}], v8, s[4:7], s46 offen offset:{3*512} sc1")
    a.stamp(5)
    if Asm.STAMPS:
        a("s_waitcnt vmcnt(0)")
    a.stamp(6)
    a.stamp(7)
    a.stamp(9, True)
    a.stamp_dump(0, vtmp=40)
    a.label("K1_end")
    a("s_endpgm")
    return [dict(name=n, grid=256, block=512, lds=K1_LDS, vgpr=208, agpr=0) for n in names]
```

```python
from asmlib import *
from layout import *
from gen_p0 import prologue, mksrd, f2u, sdivmod
from gen_k1 import entries, rnd, setexec, lanemask

K2_LDS = 72 * KB


def chan_q(a, mu, m2, t0, t1, half_n_sgpr_or_const_list):
    for step, op in enumerate(("v_permlane16_swap_b32", "v_permlane32_swap_b32")):
        a(f"v_mov_b32 {t0}, {mu}")
        a(f"v_mov_b32 {t1}, {m2}")
        a(f"{op} {mu}, {t0}")
        a(f"{op} {m2}, {t1}")
        a(f"v_add_f32 {m2}, {m2}, {t1}")
        a(f"v_sub_f32 {t1}, {mu}, {t0}")
        a(f"v_add_f32 {mu}, {mu}, {t0}")
        a(f"v_mul_f32 {mu}, 0.5, {mu}")
        a(f"v_mul_f32 {t1}, {t1}, {t1}")
        a(f"v_fma_f32 {m2}, {t1}, {half_n_sgpr_or_const_list[step]}, {m2}")


class finalize:
    XO, OO, RES, XV, PR = 104, 105, 106, 116, 136

    def __init__(self, a, pfx, res_region, out_region):
        self.a, self.pfx, self.res, self.out = a, pfx, res_region, out_region

    def setup(self):
        a = self.a
        XO, OO, RES = self.XO, self.OO, self.RES
        a("s_and_b32 s43, s3, 1")
        a("s_lshr_b32 s44, s3, 1")
        a("s_mul_i32 s53, s38, 36864")
        a("s_mul_i32 s46, s39, 9216")
        a("s_add_u32 s53, s53, s46")
        a("s_mul_i32 s46, s44, 5120")
        a("s_add_u32 s53, s53, s46")
        a("s_lshl_b32 s46, s43, 8")
        a("s_add_u32 s53, s53, s46")
        a(f"v_bfe_u32 v{XO}, v0, 5, 1")
        a(f"v_lshlrev_b32 v{XO}, 9, v{XO}")
        a(f"v_and_b32 v{OO}, 15, v0")
        a(f"v_lshl_add_u32 v{XO}, v{OO}, 4, v{XO}")
        a(f"v_bfe_u32 v{RES}, v0, 4, 1")
        a(f"v_lshl_add_u32 v{XO}, v{RES}, 3, v{XO}")
        a(f"s_add_u32 s46, s53, {self.res}")
        a("s_add_u32 s46, s46, s50")
        if self.out is None:
            a(f"v_mul_u32_u24 v{OO}, 1152, v{OO}")
            a(f"v_lshrrev_b32 v{RES}, 4, v0")
            a(f"v_lshl_add_u32 v{OO}, v{RES}, 3, v{OO}")
        for i in range(5):
            if i == 4:
                a("s_add_u32 s46, s46, 4096")
            a(f"buffer_load_dwordx2 v[{RES+2*i}:{RES+2*i+1}], v{XO}, s[4:7], s46 offen offset:{(i&3)*1024}", tag="res")
        if self.out is not None:
            a("s_mov_b32 s8, s4")
            a("s_mov_b32 s9, s5")
            a("s_mov_b32 s10, s6")
            a("s_mov_b32 s11, 0x20000")
            a(f"s_add_u32 s54, s53, {self.out}")
            a("s_add_u32 s54, s54, s50")
            a("s_movk_i32 s56, 1024")
            a(f"v_mov_b32 v{OO}, v{XO}")
        else:
            a("s_and_b32 s31, s31, 0xffff")
            a(f"s_add_u32 s54, s53, {L0+LSTRIDE+XA}")
            a("s_lshl_b32 s46, s38, 1")
            a("s_add_u32 s46, s46, s43")
            a(f"s_mul_i32 s46, s46, {16*1152}")
            a("s_mul_i32 s47, s39, 288")
            a("s_add_u32 s46, s46, s47")
            a("s_mul_i32 s47, s44, 160")
            a("s_add_u32 s46, s46, s47")
            a("s_cmp_eq_u32 s51, 0")
            a("s_cselect_b32 s8, s4, s30")
            a("s_cselect_b32 s9, s5, s31")
            a(f"s_cselect_b32 s10, s6, {XBYTES}")
            a("s_mov_b32 s11, 0x20000")
            a("s_cselect_b32 s54, s54, s46")
            a("s_cselect_b32 s56, 1024, 32")
            a("s_cselect_b64 vcc, -1, 0")
            a(f"v_cndmask_b32 v{OO}, v{OO}, v{XO}, vcc")

    def run(self, load):
        a, pfx = self.a, self.pfx
        OO, RES, XV, PR = self.OO, self.RES, self.XV, self.PR
        for r in range(4):
            a(f"v_mov_b32 v{XV+16+r}, 0")

        def fin2(i):
            a.wait_vm(("p", i))
            a.wait_lg(("p", i))
            b = PR + i * 16
            for r in range(4):
                a(f"v_add_f32 v{b+r}, v{b+r}, v{b+4+r}")
                a(f"v_add_f32 v{b+8+r}, v{b+8+r}, v{b+12+r}")
            for r in range(4):
                a(f"v_add_f32 v{b+r}, v{b+r}, v{b+8+r}")
            a(f"v_cvt_pk_bf16_f32 v{b+4}, v{b}, v{b+1}")
            a(f"v_cvt_pk_bf16_f32 v{b+5}, v{b+2}, v{b+3}")
            for hf in range(2):
                a(f"v_lshlrev_b32 v{b+2*hf}, 16, v{b+4+hf}")
                a(f"v_and_b32 v{b+2*hf+1}, 0xffff0000, v{b+4+hf}")
                a(f"v_lshlrev_b32 v{b+8+2*hf}, 16, v{RES+2*i+hf}")
                a(f"v_and_b32 v{b+8+2*hf+1}, 0xffff0000, v{RES+2*i+hf}")
            for r in range(4):
                a(f"v_add_f32 v{b+r}, v{b+r}, v{b+8+r}")
            a(f"v_cvt_pk_bf16_f32 v{b+4}, v{b}, v{b+1}")
            a(f"v_cvt_pk_bf16_f32 v{b+5}, v{b+2}, v{b+3}")
            a(f"buffer_store_dwordx2 v[{b+4}:{b+5}], v{OO}, s[8:11], s54 offen")
            a("s_add_u32 s54, s54, s56")
            for hf in range(2):
                a(f"v_lshlrev_b32 v{XV+i*4+2*hf}, 16, v{b+4+hf}")
                a(f"v_and_b32 v{XV+i*4+2*hf+1}, 0xffff0000, v{b+4+hf}")

        for i in range(4):
            load(i, PR)
        a("s_cmp_lg_u32 s44, 0")
        a(f"s_cbranch_scc1 {pfx}_skip4")
        vm0, lg0 = list(a.vm), list(a.lg)
        load(4, PR)
        a.label(f"{pfx}_skip4")
        vm4, lg4 = list(a.vm), list(a.lg)
        a.vm, a.lg = vm0, lg0
        a.wait_vm("res")
        for i in range(4):
            fin2(i)
        a("s_cmp_lg_u32 s44, 0")
        a(f"s_cbranch_scc1 {pfx}_skip5")
        a("s_waitcnt vmcnt(4) lgkmcnt(0)")
        fin2(4)
        a.label(f"{pfx}_skip5")
        if self.out is None:
            a("s_cmp_lg_u32 s51, 0")
            a(f"s_cbranch_scc1 {pfx}_nostat")
        a(f"s_mov_b32 s47, {f2u(1/16)}")
        a(f"s_mov_b32 s48, {f2u(8.0)}")
        a(f"s_mov_b32 s49, {f2u(16.0)}")
        a("s_cmp_eq_u32 s44, 0")
        a(f"s_cselect_b32 s47, {f2u(1/20)}, s47")
        a(f"s_cselect_b32 s48, {f2u(10.0)}, s48")
        a(f"s_cselect_b32 s49, {f2u(20.0)}, s49")
        a(f"v_add_f32 v10, v{XV}, v{XV+1}")
        a(f"v_add_f32 v11, v{XV+2}, v{XV+3}")
        for r in range(4, 20, 2):
            a(f"v_add_f32 v10, v10, v{XV+r}")
            a(f"v_add_f32 v11, v11, v{XV+r+1}")
        a("v_add_f32 v10, v10, v11")
        a("v_mul_f32 v10, s47, v10")
        a("v_mov_b32 v11, 0")
        a("v_mov_b32 v12, 0")
        for r in range(16):
            a(f"v_sub_f32 v{XV+r}, v{XV+r}, v10")
            a(f"v_fmac_f32 v{11+(r&1)}, v{XV+r}, v{XV+r}")
        a(f"s_cbranch_scc0 {pfx}_skip6")
        for r in range(16, 20):
            a(f"v_sub_f32 v{XV+r}, v{XV+r}, v10")
            a(f"v_fmac_f32 v{11+(r&1)}, v{XV+r}, v{XV+r}")
        a.label(f"{pfx}_skip6")
        a("v_add_f32 v11, v11, v12")
        chan_q(a, "v10", "v11", "v2", "v3", ["s48", "s49"])
        a("s_lshl_b32 s46, s38, 11")
        a("s_lshl_b32 s47, s43, 10")
        a("s_add_u32 s46, s46, s47")
        a("s_lshl_b32 s47, s39, 4")
        a("s_add_u32 s46, s46, s47")
        a("s_lshl_b32 s47, s44, 3")
        a("s_add_u32 s46, s46, s47")
        if self.out is not None:
            a(f"s_add_u32 s46, s46, {ST1}")
            a("s_add_u32 s46, s46, s50")
        else:
            a(f"s_add_u32 s46, s46, {L0+LSTRIDE+STA}")
        a("v_lshlrev_b32 v8, 6, v0")
        setexec(a, 0xFFFF)
        a("buffer_store_dwordx2 v[10:11], v8, s[4:7], s46 offen")
        if self.out is None:
            a.label(f"{pfx}_nostat")


def gen_k2(a):
    names = entries(a, "k2", "K2_main")
    prologue(a, 256, "K2_end")
    a.stamp(0); a.stamp(8, True)
    PQR, KVR, OF, DT = 16, 80, 208, 248
    a("v_and_b32 v5, 15, v0")
    a("v_lshrrev_b32 v6, 4, v0")
    a("s_and_b32 s36, s2, 7")
    a("s_lshr_b32 s37, s2, 3")
    a("s_lshl_b32 s38, s36, 3")
    a("s_lshr_b32 s39, s37, 2")
    a("s_add_u32 s38, s38, s39")
    a("s_and_b32 s39, s37, 3")
    a(f"s_mul_i32 s40, s3, {8*KVHEAD}")
    a(f"s_add_u32 s40, s40, {KV}")
    a("s_add_u32 s40, s40, s50")
    a(f"v_mov_b32 v12, {OOB}")
    a("v_lshlrev_b32 v7, 5, v6")
    a(f"v_mad_u32_u24 v8, v5, 48, v7")
    a(f"v_mad_u32_u24 v8, v5, 48, v8")
    a("v_cmp_eq_u32 vcc, 3, v6")
    a("v_cndmask_b32 v8, v8, v12, vcc")
    a("v_cndmask_b32 v7, v7, v12, vcc")
    for par, dst in ((0, "v9"), (1, "v10")):
        a(f"v_mov_b32 {dst}, v12")
        for msk, row in (
            (lanemask(lambda i, q: (i & 3) == 0), 18),
            (lanemask(lambda i, q: i == 8 * par + 1), 16),
            (lanemask(lambda i, q: i == 8 * par + 5), 17),
        ):
            setexec(a, msk)
            a(f"v_add_u32 {dst}, {row*KVROW}, v7")
        a("s_mov_b64 exec, -1")
    a("s_lshl_b32 s41, s38, 4")
    a("s_lshl_b32 s42, s3, 2")
    a("s_add_u32 s41, s41, s42")
    a("s_mul_i32 s41, s41, 2560")
    a(f"s_add_u32 s41, s41, {PQ}")
    a("s_add_u32 s41, s41, s50")
    a("v_min_u32 v11, 2, v6")
    a("v_lshlrev_b32 v11, 9, v11")
    a("v_lshl_add_u32 v11, v5, 4, v11")
    pend = []
    for h in range(8):
        for t in range(2):
            ad = "v8" if t == 0 else ("v9", "v10")[h & 1]
            for hf in range(2):
                r = KVR + h * 16 + t * 8 + hf * 4
                pend.append((f"buffer_load_dwordx4 v[{r}:{r+3}], {ad}, s[4:7], s40 offen offset:{(h&1)*KVHEAD+hf*16}", ("kv", h)))
        for u in range(2):
            r = PQR + h * 8 + u * 4
            t = f"buffer_load_dwordx4 v[{r}:{r+3}], v11, s[4:7], s41 offen offset:{(h&1)*1024+u*256}"
            if (h & 1) and u == 1:
                t += f"\ns_add_u32 s40, s40, {2*KVHEAD}\ns_add_u32 s41, s41, 2560"
            pend.append((t, ("kv", h)))
    a("s_lshl_b32 s42, s39, 2")
    a("s_add_u32 s42, s42, s3")
    a(f"s_mul_i32 s42, s42, {45*KB}")
    a(f"s_add_u32 s42, s42, {WO}")
    a("v_lshlrev_b32 v13, 4, v0")
    for f in range(45):
        t = f"buffer_load_dwordx4 a[{f*4}:{f*4+3}], v13, s[4:7], s42 offen offset:{(f&3)*1024}"
        if f & 3 == 3:
            t += "\ns_add_u32 s42, s42, 4096"
        pend.append((t, ("wo", f)))

    def issue_wo(n):
        while pend and n > 0 and len(a.vm) < 58:
            t, tag = pend.pop(0)
            lines = t.split("\n")
            a(lines[0], tag=tag)
            for l in lines[1:]:
                a(l)
            n -= 1

    issue_wo(30)
    for u in range(2):
        a(f"v_mov_b32 v{OF+32+u*4+2}, 0")
        a(f"v_mov_b32 v{OF+32+u*4+3}, 0")
    LO = 2
    for h in range(8):
        a.wait_vm(("kv", h))
        if h == 0:
            a.stamp(1)
        issue_wo(5)
        for t in range(2):
            b = KVR + h * 16 + t * 8
            for r in range(4):
                a(f"v_cvt_pk_bf16_f32 v{b+r}, v{b+2*r}, v{b+2*r+1}")
        for u in range(2):
            p = PQR + h * 8 + u * 4
            for t in range(2):
                b = KVR + h * 16 + t * 8
                d = b + 4 if u == 0 else DT + t * 4
                a(f"v_mfma_f32_16x16x32_bf16 v[{d}:{d+3}], v[{b}:{b+3}], v[{p}:{p+3}], 0")
        for u in range(2):
            d0 = KVR + h * 16 + 4 if u == 0 else DT
            d1 = KVR + h * 16 + 12 if u == 0 else DT + 4
            a(f"v_add_f32 v{d1}, {f2u(1e-6)}, v{d1}")
            a(f"v_rcp_f32 v{d1}, v{d1}")
            if u == 0:
                issue_wo(2)
            for r in range(4):
                a(f"v_mul_f32 v{d0+r}, v{d0+r}, v{d1}")
            o = OF + (h >> 1) * 8 + u * 4 + (h & 1) * 2
            a(f"v_cvt_pk_bf16_f32 v{o}, v{d0}, v{d0+1}")
            a(f"v_cvt_pk_bf16_f32 v{o+1}, v{d0+2}, v{d0+3}")
            pr = h >> 1
            if (h & 1) == 0:
                a(f"v_mul_f32 v{LO+u}, v{d1+1}, v{d1}")
            else:
                if (pr & 1) == 0:
                    a(f"v_fma_f32 v{14+u}, v{d1+1}, v{d1}, v{LO+u}")
                else:
                    a(f"v_fmac_f32 v{LO+u}, v{d1+1}, v{d1}")
                    a(f"v_cvt_pk_bf16_f32 v{OF+32+u*4+(pr>>1)}, v{14+u}, v{LO+u}")
    issue_wo(45)
    assert not pend
    fin = finalize(a, "K2", XA, X1)
    fin.setup()
    a.stamp(2)
    A2 = 180
    for ks in range(5):
        for ct in range(9):
            f = ks * 9 + ct
            a.wait_vm(("wo", f))
            for u in range(2):
                c = A2 + (ct * 2 + u) * 4
                o = OF + ks * 8 + u * 4
                cin = f"a[{c}:{c+3}]" if ks else "0"
                a(f"v_mfma_f32_16x16x32_bf16 a[{c}:{c+3}], a[{f*4}:{f*4+3}], v[{o}:{o+3}], {cin}")
    a.stamp(3)
    a(f"s_mul_i32 s47, s3, {18*KB}")
    a("v_add_u32 v8, s47, v13")
    for t in range(18):
        c = A2 + t * 4
        a(f"ds_write_b128 v8, a[{c}:{c+3}] offset:{t*1024}")
    a("s_waitcnt lgkmcnt(0)")
    a("s_barrier")
    a.stamp(4)
    a("s_mul_i32 s47, s44, 10240")
    a("s_lshl_b32 s48, s43, 10")
    a("s_add_u32 s47, s47, s48")
    a("v_add_u32 v8, s47, v13")

    def load(i, PR):
        for w in range(4):
            r = PR + (i * 4 + w) * 4
            a(f"ds_read_b128 v[{r}:{r+3}], v8 offset:{w*18*KB + i*2048}", tag=("p", i))

    fin.run(load)
    a.stamp(5)
    if Asm.STAMPS:
        a("s_waitcnt vmcnt(0)")
    a.stamp(6); a.stamp(9, True)
    a.stamp_dump(1, vtmp=24)
    a.label("K2_end")
    a("s_endpgm")
    return [dict(name=n, grid=256, block=256, lds=K2_LDS, vgpr=256, agpr=256) for n in names]
```

```python
from asmlib import *
from layout import *


def magic(d):
    return (1 << 32) // d + 1


def sdivmod(a, q, r, x, d, tmp):
    a(f"s_mov_b32 {tmp}, {magic(d)}")
    a(f"s_mul_hi_u32 {q}, {x}, {tmp}")
    a(f"s_mul_i32 {tmp}, {q}, {d}")
    a(f"s_sub_u32 {r}, {x}, {tmp}")


def prologue(a, nwg, endlabel):
    a(f"s_cmp_ge_u32 s2, {nwg}")
    a(f"s_cbranch_scc1 {endlabel}")
    a("s_load_dwordx16 s[16:31], s[0:1], 0")
    a("s_load_dwordx4 s[32:35], s[0:1], 64")
    a("v_lshrrev_b32 v1, 6, v0")
    a("v_and_b32 v0, 63, v0")
    a("v_readfirstlane_b32 s3, v1")
    a("s_waitcnt lgkmcnt(0)")
    a("s_mov_b32 s4, s34")
    a("s_and_b32 s5, s35, 0xffff")
    a(f"s_mov_b32 s6, {WS_BYTES}")
    a("s_mov_b32 s7, 0x20000")


def mksrd(a, d, lo, hi, nbytes):
    a(f"s_mov_b32 s{d}, {lo}")
    a(f"s_and_b32 s{d+1}, {hi}, 0xffff")
    a(f"s_mov_b32 s{d+2}, {nbytes}")
    a(f"s_mov_b32 s{d+3}, 0x20000")


def split3(a, x, t0, t1, o0, o1):
    a(f"v_cvt_pk_bf16_f32 {t0}, {x}, 0")
    a(f"v_lshlrev_b32 {t1}, 16, {t0}")
    a(f"v_sub_f32 {x}, {x}, {t1}")
    a(f"v_cvt_pk_bf16_f32 {t1}, {x}, 0")
    a(f"v_lshl_or_b32 {o0}, {t1}, 16, {t0}")
    a(f"v_lshlrev_b32 {t1}, 16, {t1}")
    a(f"v_sub_f32 {x}, {x}, {t1}")
    a(f"v_cvt_pk_bf16_f32 {o1}, {x}, 0")


NA, NB, NC, ND, NE, NZ = 432, 216, 96, 36, 32, 8
P0_WGS = NA + NB + NC + ND + NE + NZ
STORE_MOD = "sc1"


def gen_p0(a, name="p0_kernel"):
    a.raw(kernel_header(name))
    prologue(a, P0_WGS, "P0_end")
    a("v_and_b32 v5, 15, v0")
    a("v_lshrrev_b32 v6, 4, v0")
    a(f"s_cmp_ge_u32 s2, {NA}")
    a("s_cbranch_scc1 P0_notA")
    sdivmod(a, "s36", "s37", "s2", 144, "s38")
    sdivmod(a, "s39", "s40", "s37", 72, "s38")
    a("s_cmp_eq_u32 s39, 0")
    a("s_cselect_b32 s8, s24, s26")
    a("s_cselect_b32 s9, s25, s27")
    a("s_and_b32 s9, s9, 0xffff")
    a(f"s_mov_b32 s10, {D*F*2}")
    a("s_mov_b32 s11, 0x20000")
    a(f"s_mov_b32 s12, {F*2}")
    a("s_mul_i32 s15, s36, 24")
    a("s_mul_i32 s38, s3, 6")
    a("s_add_u32 s15, s15, s38")
    a(f"s_mul_i32 s13, s15, {8*F*2}")
    a("s_lshl_b32 s38, s40, 7")
    a("v_lshrrev_b32 v7, 3, v0")
    a(f"v_mul_u32_u24 v1, {F*2}, v7")
    a("v_and_b32 v7, 7, v0")
    a("v_lshl_add_u32 v1, v7, 4, v1")
    a("v_add_u32 v1, s38, v1")
    a("v_and_b32 v7, 1, v0")
    a("v_bfe_u32 v8, v0, 1, 1")
    a("v_lshl_or_b32 v82, v7, 1, v8")
    a("s_lshl_b32 s38, s40, 2")
    a("v_add_u32 v7, s38, v6")
    a(f"s_mov_b32 s38, {36*KB}")
    a("v_mul_lo_u32 v2, v7, s38")
    a("s_lshl_b32 s41, s39, 8")
    a(f"s_add_u32 s38, s41, {WGU}")
    a("v_lshl_add_u32 v8, v5, 4, s38")
    a("v_add_u32 v2, v2, v8")
    a("v_mov_b32 v3, 0x800")
    a("s_movk_i32 s14, 0x200")
    a("s_lshr_b32 s38, s36, 1")
    a("s_lshl_b32 s38, s38, 9")
    a("s_add_u32 s38, s38, s41")
    a("s_and_b32 s42, s36, 1")
    a("s_lshl_b32 s42, s42, 3")
    a("s_add_u32 s38, s38, s42")
    a(f"s_add_u32 s38, s38, {CSGU}")
    a("v_lshl_add_u32 v8, v5, 4, s38")
    a("v_lshl_add_u32 v80, v7, 10, v8")
    a("s_mov_b32 s43, 1")
    a("s_branch P0_tr")
    a.label("P0_notA")
    a(f"s_cmp_ge_u32 s2, {NA+NB}")
    a("s_cbranch_scc1 P0_notB")
    a(f"s_sub_u32 s37, s2, {NA}")
    sdivmod(a, "s39", "s40", "s37", 9, "s38")
    mksrd(a, 8, "s28", "s29", D * F * 2)
    a(f"s_movk_i32 s12, {D*2}")
    a("s_mul_i32 s15, s39, 24")
    a("s_mul_i32 s38, s3, 6")
    a("s_add_u32 s15, s15, s38")
    a(f"s_mul_i32 s13, s15, {8*D*2}")
    sdivmod(a, "s41", "s15", "s15", 144, "s38")
    a("s_lshl_b32 s38, s40, 7")
    a("v_lshrrev_b32 v7, 3, v0")
    a(f"v_mul_u32_u24 v1, {D*2}, v7")
    a("v_and_b32 v7, 7, v0")
    a("v_lshl_add_u32 v1, v7, 4, v1")
    a("v_add_u32 v1, s38, v1")
    a("v_and_b32 v82, 3, v0")
    a("s_lshl_b32 s38, s40, 2")
    a("v_add_u32 v7, s38, v6")
    a("v_mul_u32_u24 v8, 57, v7")
    a("v_lshrrev_b32 v8, 9, v8")
    a("v_mul_u32_u24 v9, 9, v8")
    a("v_sub_u32 v9, v7, v9")
    a("v_mul_u32_u24 v10, 36, v9")
    a(f"v_cmp_gt_u32 vcc, {UA}, v9")
    a("v_cndmask_b32 v10, v10, v9, vcc")
    a("v_mov_b32 v3, 0x400")
    a(f"v_mov_b32 v11, {UA*1024}")
    a("v_cndmask_b32 v3, v3, v11, vcc")
    a("s_lshl_b32 s38, s41, 2")
    a("v_add_u32 v8, s38, v8")
    a("v_mul_u32_u24 v8, 324, v8")
    a("v_add_u32 v8, v8, v10")
    a(f"s_mov_b32 s38, {WD}")
    a("v_lshl_add_u32 v9, v5, 4, s38")
    a("v_lshl_add_u32 v2, v8, 10, v9")
    a("s_movk_i32 s14, 0x100")
    a("s_mov_b32 s43, 0")
    a.label("P0_tr")
    a("s_mul_i32 s38, s3, 6144")
    a("s_add_u32 s38, s38, 1024")
    a("s_mov_b32 m0, s38")
    a("s_lshl_b32 s12, s12, 3")
    for rg in range(6):
        a("buffer_load_dwordx4 v1, s[8:11], s13 offen lds", tag=("g", rg))
        if rg < 5:
            a("s_add_u32 s13, s13, s12")
            a("s_add_u32 m0, m0, 1024")
    a("v_bfe_u32 v7, v0, 2, 2")
    a("v_lshlrev_b32 v7, 7, v7")
    a("v_lshl_add_u32 v7, v6, 5, v7")
    a("v_lshl_add_u32 v7, v82, 3, v7")
    a("v_add_u32 v7, s38, v7")
    for rg in range(6):
        a.wait_vm(("g", rg))
        a(f"ds_read_b64_tr_b16 v[{56+rg*4}:{57+rg*4}], v7 offset:{rg*1024}", tag=("t", rg))
        a(f"ds_read_b64_tr_b16 v[{58+rg*4}:{59+rg*4}], v7 offset:{rg*1024+512}", tag=("t", rg))
    a("s_waitcnt lgkmcnt(0)")
    a("s_branch P0_store")
    a.label("P0_notB")
    a(f"s_cmp_ge_u32 s2, {NA+NB+NC}")
    a("s_cbranch_scc1 P0_notC")
    a(f"s_sub_u32 s37, s2, {NA+NB}")
    a("s_lshr_b32 s36, s37, 5")
    a("s_and_b32 s40, s37, 31")
    a("s_lshr_b32 s39, s40, 1")
    mksrd(a, 8, "s18", "s19", D * 3 * D * 2)
    a(f"s_movk_i32 s12, {3*D*2}")
    a("s_mul_i32 s15, s36, 24")
    a("s_mul_i32 s38, s3, 6")
    a("s_add_u32 s15, s15, s38")
    a(f"s_mul_i32 s13, s15, {8*3*D*2}")
    a("s_mul_i32 s41, s39, 36")
    a("v_lshrrev_b32 v7, 1, v6")
    a("v_mul_u32_u24 v7, 576, v7")
    a("v_and_b32 v8, 1, v6")
    a("v_mad_u32_u24 v7, v8, 18, v7")
    a("v_add3_u32 v7, v7, v5, 64")
    a("v_add_u32 v7, 512, v7")
    a("v_and_b32 v9, 1, v5")
    a("v_bfe_u32 v8, v5, 1, 1")
    a("v_mad_u32_u24 v8, v8, 18, v9")
    a("v_add_u32 v8, 592, v8")
    a("v_lshrrev_b32 v10, 3, v5")
    a("v_mad_u32_u24 v10, v10, 18, v9")
    a("v_add_u32 v10, 1168, v10")
    a("v_cmp_gt_u32 vcc, 4, v5")
    a("v_cndmask_b32 v8, v10, v8, vcc")
    a("v_add_u32 v9, 20, v5")
    a("v_cmp_gt_u32 vcc, 12, v5")
    a("v_cndmask_b32 v8, v9, v8, vcc")
    a("v_lshl_add_u32 v9, v6, 4, v5")
    a("v_subrev_u32 v9, 16, v9")
    a("v_cmp_eq_u32 vcc, 0, v6")
    a("v_cndmask_b32 v8, v9, v8, vcc")
    a("s_bitcmp1_b32 s40, 0")
    a("s_cselect_b64 s[44:45], -1, 0")
    a("v_cndmask_b32 v7, v7, v8, s[44:45]")
    a("v_add_u32 v7, s41, v7")
    a("v_lshlrev_b32 v1, 1, v7")
    a("s_mov_b32 s46, 0")
    a("s_mov_b32 s47, 0xffff0000")
    a("s_and_b64 s[46:47], s[46:47], s[44:45]")
    a("s_mov_b32 vcc_lo, 0xcc0")
    a("s_mov_b32 vcc_hi, 0xffff0000")
    a("s_and_b64 vcc, vcc, s[44:45]")
    a(f"v_mov_b32 v9, {OOB}")
    a("v_cndmask_b32 v1, v1, v9, vcc")
    a("s_and_b32 s38, s40, 1")
    a("s_lshl_b32 s38, s38, 12")
    a(f"s_mul_i32 s42, s39, {133*KB}")
    a("s_add_u32 s38, s38, s42")
    a(f"s_add_u32 s38, s38, {WQKV}")
    a("v_lshl_add_u32 v2, v5, 4, s38")
    a("v_lshl_add_u32 v2, v6, 10, v2")
    a("v_cndmask_b32 v2, v2, v9, s[46:47]")
    a(f"v_mov_b32 v3, {7*KB}")
    a("s_movk_i32 s14, 0x100")
    a("s_lshl_b32 s38, s36, 8")
    a(f"s_add_u32 s38, s38, {18*7*KB}")
    a("v_add_u32 v80, s38, v2")
    a("s_mov_b32 s43, 2")
    a.label("P0_gather")
    for n in range(48):
        a(f"buffer_load_ushort v{8+n}, v1, s[8:11], s13 offen", tag=("g", n // 8))
        if n < 47:
            a("s_add_u32 s13, s13, s12")
    for rg in range(6):
        a.wait_vm(("g", rg))
        for r in range(4):
            b = 8 + rg * 8 + 2 * r
            a(f"v_lshl_or_b32 v{56+rg*4+r}, v{b+1}, 16, v{b}")
    a.label("P0_store")
    a("v_mov_b32 v81, 0")
    a("s_mov_b32 s48, 0x3f803f80")
    for rg in range(6):
        a("s_lshr_b32 s38, s15, 2")
        a("s_and_b32 s41, s15, 3")
        a("s_mul_i32 s41, s41, s14")
        a("v_mad_u32_u24 v4, s38, v3, v2")
        a("s_add_u32 s15, s15, 1")
        a(f"buffer_store_dwordx4 v[{56+rg*4}:{59+rg*4}], v4, s[4:7], s41 offen {STORE_MOD}", tag="st")
        for r in range(4):
            a(f"v_dot2_f32_bf16 v81, v{56+rg*4+r}, s48, v81")
    a("s_cmp_eq_u32 s43, 0")
    a("s_cbranch_scc1 P0_end")
    a("s_lshl_b32 s38, s3, 8")
    a("v_lshl_add_u32 v4, v0, 2, s38")
    a("ds_write_b32 v4, v81")
    a("s_waitcnt lgkmcnt(0)")
    a("s_barrier")
    a("s_cmp_lg_u32 s3, 0")
    a("s_cbranch_scc1 P0_end")
    a("ds_read_b32 v8, v4 offset:256")
    a("ds_read_b32 v9, v4 offset:512")
    a("ds_read_b32 v10, v4 offset:768")
    a("s_waitcnt lgkmcnt(0)")
    a("v_add_f32 v81, v81, v8")
    a("v_add_f32 v9, v9, v10")
    a("v_add_f32 v81, v81, v9")
    split3(a, "v81", "v8", "v9", "v12", "v13")
    a("v_mov_b32 v14, 0")
    a("v_mov_b32 v15, 0")
    a("s_cmp_eq_u32 s43, 2")
    a("s_cbranch_scc1 P0_csC")
    a("s_cmp_eq_u32 s36, 2")
    a("s_cbranch_scc1 P0_cs4")
    a(f"buffer_store_dwordx2 v[12:13], v80, s[4:7], 0 offen")
    a("s_endpgm")
    a.label("P0_csC")
    a("s_cmp_lg_u32 s36, 2")
    a("s_cbranch_scc1 P0_cs4")
    a("v_mov_b32 v16, 0")
    a("v_mov_b32 v17, 0")
    a("v_mov_b32 v18, 0")
    a("v_mov_b32 v19, 0")
    a(f"buffer_store_dwordx4 v[16:19], v80, s[4:7], 0 offen offset:256")
    a.label("P0_cs4")
    a(f"buffer_store_dwordx4 v[12:15], v80, s[4:7], 0 offen")
    a("s_endpgm")
    a.label("P0_notC")
    a(f"s_cmp_ge_u32 s2, {NA+NB+NC+ND}")
    a("s_cbranch_scc1 P0_notD")
    a.vm = []
    a(f"s_sub_u32 s37, s2, {NA+NB+NC}")
    sdivmod(a, "s39", "s40", "s37", 9, "s38")
    mksrd(a, 8, "s20", "s21", D * D * 2)
    a("s_lshl_b32 s38, s40, 6")
    a("v_add_u32 v7, s38, v0")
    a("v_lshlrev_b32 v1, 1, v7")
    a("s_mul_i32 s41, s39, 144")
    a("s_lshl_b32 s38, s3, 2")
    a("s_add_u32 s42, s41, s38")
    a(f"s_mul_i32 s42, s42, {D*2}")
    a("s_lshr_b32 s38, s3, 1")
    a("s_mul_i32 s38, s38, 18")
    a("s_add_u32 s41, s41, s38")
    a("s_and_b32 s38, s3, 1")
    a("s_add_u32 s41, s41, s38")
    a("s_add_u32 s41, s41, 16")
    a(f"s_mul_i32 s41, s41, {D*2}")
    for ks in range(4):
        for j in range(8):
            row = 36 * ks + 18 * (j >> 2) + (j & 3)
            a(f"s_add_u32 s13, s42, {row*D*2}")
            a(f"buffer_load_ushort v{8+ks*8+j}, v1, s[8:11], s13 offen", tag=("g", ks))
    for j in range(4):
        a(f"s_add_u32 s13, s41, {36*j*D*2}")
        a(f"buffer_load_ushort v{40+j}, v1, s[8:11], s13 offen", tag=("g", 4))
    a("s_lshl_b32 s38, s40, 2")
    a("v_add_u32 v7, s38, v6")
    a("v_mul_u32_u24 v2, 57, v7")
    a("v_lshrrev_b32 v2, 9, v2")
    a("v_mul_u32_u24 v3, 9, v2")
    a("v_sub_u32 v3, v7, v3")
    a("v_lshlrev_b32 v2, 2, v2")
    a("v_add_u32 v2, s39, v2")
    a("v_mad_u32_u24 v2, v2, 45, v3")
    a("s_lshl_b32 s38, s3, 8")
    a(f"s_add_u32 s38, s38, {WO}")
    a("v_lshl_add_u32 v3, v5, 4, s38")
    a("v_lshl_add_u32 v2, v2, 10, v3")
    a("v_mov_b32 v74, 0")
    a("v_mov_b32 v75, 0")
    for ks in range(5):
        a.wait_vm(("g", ks))
        for r in range(4 if ks < 4 else 2):
            b = 8 + ks * 8 + 2 * r
            a(f"v_lshl_or_b32 v{56+ks*4+r}, v{b+1}, 16, v{b}")
        a(f"s_mov_b32 s38, {ks*9*KB}")
        a(f"buffer_store_dwordx4 v[{56+ks*4}:{59+ks*4}], v2, s[4:7], s38 offen {STORE_MOD}", tag="st")
    a("s_endpgm")
    a.label("P0_notD")
    a(f"s_cmp_ge_u32 s2, {NA+NB+NC+ND+NE}")
    a("s_cbranch_scc1 P0_zero")
    a.vm = []
    a(f"s_sub_u32 s37, s2, {NA+NB+NC+ND}")
    a("s_lshl_b32 s37, s37, 2")
    a("s_add_u32 s37, s37, s3")
    mksrd(a, 8, "s16", "s17", XBYTES)
    a("s_lshl_b32 s38, s37, 4")
    a("v_add_u32 v7, s38, v5")
    a("v_mul_u32_u24 v1, 1152, v7")
    a("v_lshl_add_u32 v1, v6, 4, v1")
    for i in range(18):
        a(f"buffer_load_dwordx4 v[{8+4*i}:{11+4*i}], v1, s[8:11], 0 offen offset:{64*i}", tag=("x", i))
    a("s_lshr_b32 s39, s37, 1")
    a("s_mul_i32 s39, s39, 36864")
    a(f"s_add_u32 s39, s39, {L0+XA}")
    a("v_and_b32 v2, 31, v7")
    a("v_lshlrev_b32 v2, 4, v2")
    a("v_lshl_add_u32 v2, v6, 9, v2")
    a("s_mov_b32 s48, 0x3f803f80")
    a("v_mov_b32 v81, 0")
    a("v_mov_b32 v82, 0")
    for i in range(18):
        a.wait_vm(("x", i))
        a(f"buffer_store_dwordx4 v[{8+4*i}:{11+4*i}], v2, s[4:7], s39 offen {STORE_MOD}", tag="st")
        a("s_add_u32 s39, s39, 2048")
        for r in range(4):
            acc = 81 if i < 10 else 82
            a(f"v_dot2_f32_bf16 v{acc}, v{8+4*i+r}, s48, v{acc}")
    a(f"v_mul_f32 v84, {f2u(1.0/80)}, v81")
    a(f"v_mul_f32 v86, {f2u(1.0/64)}, v82")
    a("v_mov_b32 v85, 0")
    a("v_mov_b32 v87, 0")
    for r in range(72):
        m = 84 if r < 40 else 86
        a(f"v_lshlrev_b32 v82, 16, v{8+r}")
        a(f"v_and_b32 v83, 0xffff0000, v{8+r}")
        a(f"v_sub_f32 v82, v82, v{m}")
        a(f"v_sub_f32 v83, v83, v{m}")
        a(f"v_fmac_f32 v{m+1}, v82, v82")
        a(f"v_fmac_f32 v{m+1}, v83, v83")
    a("v_lshlrev_b32 v2, 6, v7")
    a("v_lshl_add_u32 v2, v6, 4, v2")
    a(f"s_mov_b32 s39, {L0+STA}")
    a(f"buffer_store_dwordx4 v[84:87], v2, s[4:7], s39 offen")
    a("s_endpgm")
    a.label("P0_zero")
    a(f"s_sub_u32 s37, s2, {NA+NB+NC+ND+NE}")
    a("s_lshr_b32 s38, s37, 2")
    a(f"s_mul_i32 s38, s38, {LSTRIDE}")
    a("s_and_b32 s39, s37, 3")
    a("s_lshl_b32 s39, s39, 14")
    a("s_add_u32 s38, s38, s39")
    a("s_lshl_b32 s39, s3, 12")
    a("s_add_u32 s38, s38, s39")
    a(f"s_add_u32 s38, s38, {L0+KV}")
    a("v_lshlrev_b32 v1, 4, v0")
    for r in range(4):
        a(f"v_mov_b32 v{8+r}, 0")
    for r in range(4):
        a(f"buffer_store_dwordx4 v[8:11], v1, s[4:7], s38 offen offset:{1024*r}")
    a.label("P0_end")
    a("s_endpgm")
    return dict(name=name, grid=P0_WGS, block=256, lds=1024+4*6144, vgpr=88, agpr=0)


import struct


def f2u(x):
    return "0x%08x" % struct.unpack("<I", struct.pack("<f", x))[0]
```

```python
S, D, F = 2048, 576, 4608
KB = 1024
UA = 4


def _al(x, a=4096):
    return (x + a - 1) // a * a


_off = 0


def _alloc(n):
    global _off
    o = _off
    _off = _al(_off + n)
    return o


WGU = _alloc(288 * 36 * KB)
CSGU = _alloc(288 * KB)
WD = _alloc(16 * 324 * KB)
WQKV = _alloc(16 * 19 * 7 * KB)
WO = _alloc(16 * 45 * KB)
XBYTES = S * D * 2
KVROW = 96
KVHEAD = 19 * KVROW
KVBYTES = 65536
FLG = 61440
L0 = _off
XA = _alloc(XBYTES) - L0
STA = _alloc(S * 64) - L0
PQ = _alloc(64 * 16 * 5 * 512) - L0
KV = _alloc(KVBYTES) - L0
X1 = _alloc(XBYTES) - L0
ST1 = _alloc(S * 64) - L0
HB = _alloc(S * F * 2) - L0
PART = _alloc(4 * S * D * 4) - L0
LSTRIDE = _off - L0
WS_END = L0 + 2 * LSTRIDE
WS_BYTES = 256 << 20
DIAG = 200 << 20
assert WS_END < WS_BYTES
OOB = 0x20000000


def wd_streampos(unit, ks):
    return ks * UA + unit if unit < UA else UA * 36 + (unit - UA) * 36 + ks
```

```python
import sys
from asmlib import *
from layout import *
import gen_p0

HEADER = open("interleave_layers__linear_attn_block__geglu_ffn__prompt.s.ref").read().split("; Override launch")[0]

def build(seq_fn):
    a = Asm()
    kernels, launches = seq_fn(a)
    out = [HEADER.rstrip()]
    for k in launches:
        out.append(f"; @launch kernel={k['name']} grid=({k['grid']},1,1) block=({k['block']},1,1) lds={k['lds']}")
    out.append('.amdgcn_target "amdgcn-amd-amdhsa--gfx950"\n.text')
    out.append(a.text())
    out.append('.section .rodata,"a"')
    for k in kernels:
        out.append(kernel_desc(k["name"], k["vgpr"], k["agpr"], k.get("sgpr", 100)))
    return "\n".join(out) + "\n"

def seq(a):
    ks = []
    p0 = gen_p0.gen_p0(a); ks.append(p0)
    launches = [p0]
    try:
        import gen_main
        more, l2 = gen_main.gen_all(a)
        ks += more; launches += l2
    except ModuleNotFoundError:
        pass
    return ks, launches

if __name__ == "__main__":
    import os
    if os.environ.get("STAMPS"):
        Asm.STAMPS = True
    out = sys.argv[1] if len(sys.argv) > 1 else "k.s"
    open(out, "w").write(build(seq))
    print("wrote", out)
```

```python
from asmlib import *
from layout import *
from gen_p0 import prologue, mksrd, f2u, sdivmod
from gen_k1 import entries, rnd, setexec, lanemask, stats_combine, LOG2E
import math, os
INIT_ISSUE = int(os.environ.get('INIT_ISSUE', '20'))
ROTMASK = int(os.environ.get('ROTMASK', '0'))

SLOT = 36 * KB
B1_CS = 4 * SLOT
B1_LDS = B1_CS + 12 * KB
NWB = 6
AH = NWB - 1
SETS = (16, 48, 80, 112)
WB = 144
TMP = 172
CST = 176
STD = 184
MR = 216
GC = -2.0 * math.sqrt(2.0 / math.pi) * LOG2E


def xreg(ks, tl):
    if ks == 36:
        r = MR + tl * 4
        return f"v[{r}:{r+3}]"
    f = ks * 2 + tl
    if f < 64:
        return f"a[{f*4}:{f*4+3}]"
    r = 224 + (f - 64) * 4
    return f"v[{r}:{r+3}]"


def epilogue_list(X):
    L = []
    for tl in range(2):
        C0, C1, Dd = (f"v{CST+tl*3+i}" for i in range(3))
        for p in range(4):
            ga, gb = X + tl * 16 + 2 * p, X + tl * 16 + 2 * p + 1
            ua, ub = ga + 8, gb + 8
            ta, tb = TMP + (p & 1) * 2, TMP + (p & 1) * 2 + 1
            L += [
                f"v_mul_f32 v{ta}, v{ga}, v{ga}",
                f"v_mul_f32 v{tb}, v{gb}, v{gb}",
                f"v_fma_f32 v{ta}, v{ta}, {C1}, {C0}",
                f"v_fma_f32 v{tb}, v{tb}, {C1}, {C0}",
                f"v_mul_f32 v{ta}, v{ta}, v{ga}",
                f"v_mul_f32 v{tb}, v{tb}, v{gb}",
                f"v_exp_f32 v{ta}, v{ta}",
                f"v_exp_f32 v{tb}, v{tb}",
                f"v_mul_f32 v{ga}, v{ga}, v{ua}",
                f"v_mul_f32 v{gb}, v{gb}, v{ub}",
                f"v_fma_f32 v{ta}, v{ta}, {Dd}, {Dd}",
                f"v_fma_f32 v{tb}, v{tb}, {Dd}, {Dd}",
                f"v_rcp_f32 v{ta}, v{ta}",
                f"v_rcp_f32 v{tb}, v{tb}",
                f"v_mul_f32 v{ga}, v{ga}, v{ta}",
                f"v_mul_f32 v{gb}, v{gb}, v{tb}",
                f"v_cvt_pk_bf16_f32 v{STD+tl*4+p}, v{ga}, v{gb}",
            ]
            if os.environ.get("DEGRADE"):
                L.append(f"v_and_b32 v{STD+tl*4+p}, {os.environ['DEGRADE']}, v{STD+tl*4+p}")
        L.append((f"buffer_store_dwordx4 v[{STD+tl*4}:{STD+tl*4+3}], v1, s[4:7], s{44+tl} offen sc1", "st"))
        L.append(f"s_add_u32 s{44+tl}, s{44+tl}, 1024")
    return L


def dma_list(tag):
    L = []
    for i in range(9):
        t = f"buffer_load_dwordx4 v1, s[4:7], s48 offen offset:{(i&3)*1024} lds"
        if i in (3, 7):
            t += "\ns_add_u32 s48, s48, 4096\ns_add_u32 m0, m0, 4096"
        L.append((t, tag))
    return L


def dma_setup():
    return [
        "s_cmp_gt_i32 s42, 0\ns_cselect_b32 s48, s40, s49\ns_mov_b32 m0, s41",
        f"s_add_u32 s40, s40, {SLOT}\ns_sub_u32 s42, s42, 1\ns_add_u32 s41, s41, {SLOT}",
        f"s_cmp_ge_u32 s41, {4*SLOT}\ns_cselect_b32 s47, {4*SLOT}, 0\ns_sub_u32 s41, s41, s47",
    ]


def slot_adv():
    return [
        f"s_add_u32 s43, s43, {SLOT}\ns_cmp_ge_u32 s43, {4*SLOT}\ns_cselect_b32 s47, {4*SLOT}, 0\ns_sub_u32 s43, s43, s47",
    ]


def emit(a, it):
    if callable(it):
        it(a)
    elif isinstance(it, tuple):
        lines = it[0].split("\n")
        a(lines[0], tag=it[1])
        for l in lines[1:]:
            a(l)
    else:
        a(it)


def spread(items, g0, g1, fl):
    n = len(items)
    for i, it in enumerate(items):
        g = g0 + (i * (g1 - g0)) // n
        fl.setdefault(g, []).append(it)


class Step:
    def __init__(self, tag, rd, buf, mf, before_read=None, before_use=None):
        self.tag, self.rd, self.buf, self.mf = tag, rd, buf, mf
        self.before_read, self.before_use = before_read, before_use


def run_steps(a, steps, nxt, fillers, AH=AH):
    allst = steps + nxt
    g = 0
    for n, st in enumerate(steps):
        m = n + AH
        if m < len(allst):
            issue_read(a, allst[m])
        if st.before_use:
            st.before_use(a)
        a.wait_lg(st.tag)
        for mf in st.mf:
            a(mf)
            for it in fillers.get(g, []):
                emit(a, it)
            g += 1


def issue_read(a, st):
    if st.before_read:
        st.before_read(a)
    w = st.buf
    lines = st.rd.split("\n")
    a(f"ds_read_b128 v[{w}:{w+3}], {lines[0]}", tag=st.tag)
    for l in lines[1:]:
        a(l)


def mf2(X, w, ks, first):
    out = []
    for tl in range(2):
        c = X + tl * 16
        cin = "0" if first else f"v[{c}:{c+15}]"
        out.append(f"v_mfma_f32_32x32x16_bf16 v[{c}:{c+15}], v[{w}:{w+3}], {xreg(ks, tl)}, {cin}")
    return out


def unit_steps(uid, X):
    def sync(a):
        a.wait_vm(("w", uid))
        a("s_barrier")
        a("v_add_u32 v2, s43, v1")

    st = []
    for n in range(36):
        w = WB + (n % NWB) * 4
        st.append(Step((uid, n), f"v2 offset:{n*1024}", w, mf2(X, w, n, n == 0), before_read=sync if n == 0 else None))
    w = WB + NWB * 4
    st.append(Step((uid, 36), "v3\nv_add_u32 v3, 0x400, v3", w, mf2(X, w, 36, False)))
    return st


def gen_b1(a):
    names = entries(a, "b1", "B1_main")
    prologue(a, 256, "B1_end")
    a.stamp(0)
    a.stamp(8, True)
    a("v_lshlrev_b32 v1, 4, v0")
    a("s_and_b32 s36, s2, 7")
    a("s_lshr_b32 s37, s2, 3")
    a("s_and_b32 s38, s36, 1")
    a("s_lshl_b32 s38, s38, 2")
    a("s_and_b32 s39, s37, 3")
    a("s_add_u32 s38, s38, s39")
    a("s_lshr_b32 s46, s37, 2")
    a("s_add_u32 s57, s39, s46")
    a(f"s_and_b32 s57, s57, {ROTMASK}")
    a("s_lshr_b32 s39, s36, 1")
    a("s_lshl_b32 s39, s39, 3")
    a("s_add_u32 s39, s39, s46")
    a(f"s_mov_b32 s49, {OOB}")
    a("s_lshl_b32 s52, s38, 3")
    a("s_lshl_b32 s53, s3, 1")
    a("s_add_u32 s52, s52, s53")
    a("s_lshl_b32 s46, s52, 11")
    a(f"s_add_u32 s46, s46, {ST1}")
    a("s_add_u32 s46, s46, s50")
    a("v_and_b32 v4, 31, v0")
    a("v_lshlrev_b32 v4, 6, v4")
    a("v_lshrrev_b32 v5, 5, v0")
    a("v_lshl_add_u32 v4, v5, 5, v4")
    SR = SETS[3]
    a("s_mov_b32 s53, s46")
    statl = []
    for tl in range(2):
        for i in range(2):
            r = SR + tl * 16 + i * 4
            statl.append((f"buffer_load_dwordx4 v[{r}:{r+3}], v4, s[4:7], s53 offen offset:{tl*2048+i*16}", "stat"))
    a(f"s_mul_i32 s58, s39, {9*SLOT}")
    a(f"s_add_u32 s58, s58, {WGU}")
    a(f"s_mul_i32 s59, s3, {SLOT}")
    a(f"s_add_u32 s40, s58, {4*SLOT}")
    a("s_add_u32 s58, s58, s59")
    a("s_mul_i32 s62, s52, 36864")
    a(f"s_add_u32 s62, s62, {X1}")
    a("s_add_u32 s62, s62, s50")
    pend = []
    for g in range(4):
        pend.append(
            f"s_add_u32 s63, s57, {g}\ns_and_b32 s63, s63, 3\ns_mul_i32 s63, s63, {9*KB}\ns_add_u32 s48, s58, s63\n"
            f"s_add_u32 m0, s59, {g*9*KB}\ns_add_u32 s54, s62, s63\ns_add_u32 s55, s54, 36864"
        )
        pend += dma_list(("wa", g))
        for j in range(9):
            i = g * 9 + j
            for tl in range(2):
                t = f"buffer_load_dwordx4 {xreg(i, tl)}, v1, s[4:7], s{54+tl} offen offset:{(j&3)*1024}"
                if tl == 1 and (j & 3) == 3:
                    t += "\ns_add_u32 s54, s54, 4096\ns_add_u32 s55, s55, 4096"
                pend.append((t, ("x", i)))
        if g == 2:
            pend += statl
            pend.append(
                f"s_mul_i32 s48, s39, {9*KB}\ns_mul_i32 s47, s3, {3*KB}\ns_add_u32 s48, s48, s47\ns_add_u32 s48, s48, {CSGU}\n"
                f"s_add_u32 m0, s47, {B1_CS}"
            )
            for i in range(3):
                pend.append((f"buffer_load_dwordx4 v1, s[4:7], s48 offen offset:{i*1024} lds", "cs"))

    def issue(nv):
        while pend and nv > 0 and len(a.vm) < 60:
            it = pend.pop(0)
            emit(a, it)
            if isinstance(it, tuple):
                nv -= 1

    issue(INIT_ISSUE)
    a(f"s_mul_i32 s44, s52, {576*512}")
    a(f"s_mul_i32 s46, s39, {9*KB}")
    a("s_add_u32 s44, s44, s46")
    a(f"s_add_u32 s44, s44, {HB}")
    a("s_add_u32 s44, s44, s50")
    a(f"s_add_u32 s45, s44, {576*512}")
    a(f"v_add_u32 v2, {2*SLOT}, v1")
    a(f"v_add_u32 v3, {B1_CS}, v1")
    a(f"s_mov_b32 s43, {3*SLOT}")
    a("s_add_u32 s47, s57, s3")
    a("s_and_b32 s47, s47, 3")
    a(f"s_mul_i32 s47, s47, {9*KB}")
    a("s_add_u32 s40, s40, s47")
    a(f"s_mul_i32 s41, s3, {9*KB}")
    a("s_mov_b32 s42, 5")
    def do_stats(tl):
        def f(a):
            assert not any(isinstance(it, tuple) and it[1] == "stat" for it in pend)
            a.wait_vm("stat")
            stats_combine(a, SR + tl * 16, [80, 64] * 2, "v8", "v5", f"v{MR+tl*4}", "v6", xch=["v_permlane32_swap_b32"])
            for r in range(1, 4):
                a(f"v_mov_b32 v{MR+tl*4+r}, v{MR+tl*4}")
            C0, C1, Dd = (f"v{CST+tl*3+i}" for i in range(3))
            a(f"v_mul_f32 {Dd}, v6, v6")
            a("v_rcp_f32 v6, v6")
            a(f"v_mul_f32 {C0}, {f2u(GC)}, v6")
            a("v_mul_f32 v5, v6, v6")
            a(f"v_mul_f32 v5, {f2u(0.044715)}, v5")
            a(f"v_mul_f32 {C1}, v5, {C0}")
        return f

    sa = Asm()
    for tl in range(2):
        save = list(pend)
        pend.clear()
        do_stats(tl)(sa)
        pend.extend(save)
    stat_code = [o.text for o in sa.out if o.mn != "s_nop"]
    a.stamp(1)
    stA = []
    n = 0
    for i in range(36):
        for u in range(3):
            w = WB + (n % NWB) * 4
            base, off = ("v1", "v7", "v2")[u], i * 1024
            br = bu = None
            if u == 0 and i % 9 == 0:
                def br(a, g=i // 9):
                    assert not any(isinstance(it, tuple) and it[1] == ("wa", g) for it in pend)
                    a.wait_vm(("wa", g))
                    a("s_barrier")
            if u == 0:
                def bu(a, i=i):
                    assert not any(isinstance(it, tuple) and it[1] == ("x", i) for it in pend)
                    a.wait_vm(("x", i))
            stA.append(Step(("A", n), f"{base} offset:{off}", w, mf2(SETS[u], w, i, i == 0), br, bu))
            n += 1
    for u in range(3):
        w = WB + (n % NWB) * 4
        stA.append(Step(("A", n), "v3\nv_add_u32 v3, 0x400, v3", w, mf2(SETS[u], w, 36, False)))
        n += 1
    a(f"v_add_u32 v7, {SLOT}, v1")
    u3 = unit_steps(3, SETS[3])
    spare = [WB + NWB * 4, TMP, STD]
    for k in range(3):
        st = stA[108 + k]
        st.buf = spare[k]
        st.mf = mf2(SETS[k], spare[k], 36, False)
    def sync3(a):
        a("s_barrier")
        a("v_add_u32 v2, s43, v1")
    u3[0].before_read = sync3
    for k in range(AH):
        issue_read(a, stA[k])
    a.stamp(2)
    flA = {}
    for gidx in range(0, 216):
        if gidx < 40 or gidx % 2 == 0:
            flA[gidx] = [lambda a: issue(1)]
    flA.setdefault(170, []).append(lambda a: a.wait_vm("stat"))
    spread(stat_code, 171, 212, flA)
    run_steps(a, stA, u3, flA)
    assert not pend
    a.stamp(3)
    u4 = unit_steps(4, SETS[0])
    fl = {}
    spread(slot_adv() + dma_setup() + dma_list(("w", 4)), 0, 30, fl)
    fl.setdefault(12, []).append("s_barrier")
    spread(dma_setup() + dma_list(("w", 5)), 30, 62, fl)
    spread(epilogue_list(SETS[0]) + epilogue_list(SETS[1]), 4, 72, fl)
    run_steps(a, u3, u4, fl)
    u5 = unit_steps(5, SETS[1])
    fl = {}
    spread(slot_adv() + dma_setup() + dma_list(("w", 6)), 0, 60, fl)
    spread(epilogue_list(SETS[2]) + epilogue_list(SETS[3]), 2, 72, fl)
    run_steps(a, u4, u5, fl)
    a.stamp(4)
    a("s_mov_b32 s56, 0")
    a.label("B1_loop")

    def body(a, base):
        for k in range(2):
            uid = 5 + base + k
            fl = {}
            spread(slot_adv() + dma_setup() + dma_list(("w", uid + 2)), 0, 60, fl)
            spread(epilogue_list(SETS[k]), 4, 70, fl)
            run_steps(a, unit_steps(uid, SETS[1 - k]), unit_steps(uid + 1, SETS[k]), fl)

    loop_checked(a, body)
    a("s_add_u32 s56, s56, 1")
    a("s_cmp_lt_u32 s56, 2")
    a("s_cbranch_scc1 B1_loop")
    a.check_backedge("B1_loop")
    a.stamp(5)
    for it in epilogue_list(SETS[0]):
        emit(a, it)
    if Asm.STAMPS:
        a("s_waitcnt vmcnt(0)")
    a.stamp(6)
    a.stamp(9, True)
    a.stamp_dump(2)
    a.label("B1_end")
    a("s_endpgm")
    return [dict(name=n, grid=256, block=256, lds=B1_LDS, vgpr=256, agpr=256) for n in names]
```

```python
from asmlib import *
from layout import *
from gen_p0 import prologue, mksrd, f2u, sdivmod
from gen_k1 import entries, rnd, setexec, lanemask
from gen_k2 import chan_q
from gen_b1 import dma_list, dma_setup, emit, spread, slot_adv, SLOT, Step, run_steps, issue_read, INIT_ISSUE
import os
NWB = int(os.environ.get('B2_NWB', '6'))
AH = NWB - 1

B2_LDS = 4 * SLOT
WB = 88
ACC = [16 + 8 * p for p in range(9)]
RP = 112
RES = 208
XV = 88
assert UA == 4


def wbuf(n, cid):
    b = n % NWB
    return WB + b * 4 if b < 6 else 184 + (b - 6) * 4 - 0


def hreg(ks, u):
    f = ks * 2 + u
    if f < 64:
        return f"a[{f*4}:{f*4+3}]"
    r = 224 + (f - 64) * 4
    return f"v[{r}:{r+3}]"


def store_list(pos):
    X = ACC[pos]
    L = []
    so = "s45" if pos == 0 else "s46"
    if pos:
        L.append("s_add_u32 s46, s44, s43\ns_add_u32 s43, s43, 8192\ns_and_b32 s43, s43, 0xffff")
    for u in range(2):
        L.append((f"buffer_store_dwordx4 v[{X+u*4}:{X+u*4+3}], v1, s[4:7], {so} offen offset:{u*1024} sc1", ("st", pos)))
    return L


def mf2(X, w, ks, first):
    out = []
    for u in range(2):
        c = X + u * 4
        cin = "0" if first else f"v[{c}:{c+3}]"
        out.append(f"v_mfma_f32_16x16x32_bf16 v[{c}:{c+3}], v[{w}:{w+3}], {hreg(ks, u)}, {cin}")
    return out


def chunk_steps(cid, info, bu=None, extra_wait=None):
    def sync(a):
        a.wait_vm([("w", cid)] + (extra_wait or []))
        a("s_barrier")

    st = []
    base = ("v1", "v2", "v3", "v5")[cid % 4]
    for n in range(36):
        w = wbuf(n, cid)
        ks, X, first = info(n)
        st.append(Step((cid, n), f"{base} offset:{n*1024}", w, mf2(X, w, ks, first), sync if n == 0 else None, bu(n) if bu else None))
    return st


def dma_grp(c):
    return [f"s_add_u32 s48, s61, {c*SLOT}\ns_add_u32 m0, s41, {(c%4)*SLOT}"] + dma_list(("w", c))


def poll(a, name, off, nwords_mask_fn):
    pass


def gen_b2(a):
    names = entries(a, "b2", "B2_main")
    prologue(a, 256, "B2_end")
    a.stamp(0)
    a.stamp(8, True)
    a("v_lshlrev_b32 v1, 4, v0")
    a("s_and_b32 s36, s2, 7")
    a("s_lshr_b32 s37, s2, 3")
    a("s_and_b32 s38, s36, 1")
    a("s_lshl_b32 s38, s38, 3")
    a("s_and_b32 s39, s37, 7")
    a("s_add_u32 s38, s38, s39")
    a("s_lshr_b32 s39, s37, 3")
    a("s_lshr_b32 s57, s36, 1")
    a(f"s_mov_b32 s49, {OOB}")
    a("s_lshl_b32 s61, s57, 2")
    a("s_add_u32 s61, s61, s39")
    a(f"s_mul_i32 s61, s61, {9*SLOT}")
    a(f"s_add_u32 s61, s61, {WD}")
    a(f"s_mul_i32 s41, s3, {9*KB}")
    a("s_add_u32 s61, s61, s41")
    a("s_lshl_b32 s52, s38, 2")
    a("s_add_u32 s52, s52, s3")
    a(f"s_mul_i32 s54, s52, {576*512}")
    a(f"s_mul_i32 s46, s57, {144*512}")
    a("s_add_u32 s54, s54, s46")
    a(f"s_add_u32 s54, s54, {HB}")
    a("s_add_u32 s54, s54, s50")
    a("v_and_b32 v8, 15, v0")
    a("v_lshrrev_b32 v9, 4, v0")
    a("v_lshlrev_b32 v4, 4, v8")
    a("v_lshl_add_u32 v4, v9, 9, v4")
    pend = []
    for g in range(4):
        pend += dma_grp(g)
        for j in range(9):
            i = g * 9 + j
            for u in range(2):
                t = f"buffer_load_dwordx4 {hreg(i, u)}, v4, s[4:7], s54 offen offset:{(i&1)*2048+u*256}"
                if u == 1 and (i & 1):
                    t += "\ns_add_u32 s54, s54, 4096"
                pend.append((t, ("x", i)))

    def issue(nv):
        while pend and nv > 0 and len(a.vm) < 60:
            it = pend.pop(0)
            emit(a, it)
            if isinstance(it, tuple):
                nv -= 1

    issue(INIT_ISSUE)
    a("s_lshl_b32 s53, s38, 2")
    a("s_add_u32 s53, s53, s39")
    a(f"s_mul_i32 s55, s53, {4*9*8192}")
    a(f"s_add_u32 s55, s55, {PART}")
    a("s_add_u32 s55, s55, s50")
    a("s_lshl_b32 s46, s3, 11")
    a("s_add_u32 s55, s55, s46")
    a(f"s_mul_i32 s44, s57, {9*8192}")
    a("s_add_u32 s44, s44, s55")
    a(f"s_add_u32 s45, s44, {8*8192}")
    a("s_add_u32 s43, s57, 1")
    a("s_and_b32 s43, s43, 3")
    a("s_lshl_b32 s46, s43, 2")
    a("v_mov_b32 v14, s46")
    a("s_lshl_b32 s43, s43, 14")
    a(f"v_add_u32 v2, {SLOT}, v1")
    a(f"v_add_u32 v3, {2*SLOT}, v1")
    a(f"v_add_u32 v5, {3*SLOT}, v1")
    a("s_lshl_b32 s53, s53, 6")
    a(f"s_add_u32 s53, s53, {KV+FLG}")
    a("s_add_u32 s53, s53, s50")
    a("s_lshl_b32 s46, s57, 2")
    a("s_cmp_eq_u32 s3, 0")
    a("s_cselect_b32 s46, s46, s49")
    a("v_mov_b32 v6, s49")
    a("v_writelane_b32 v6, s46, 0")
    a("v_mov_b32 v7, 1")
    a("v_mov_b32 v10, 0")
    for k in range(1, 4):
        a(f"s_add_u32 s46, s57, {k}")
        a("s_and_b32 s46, s46, 3")
        a(f"s_mul_i32 s46, s46, {9*8192}")
        a(f"s_add_u32 s{57+k}, s55, s46")
    a("s_lshl_b32 s62, s57, 14")
    a("s_cmp_eq_u32 s3, s57")
    a("s_cselect_b32 s46, 0, s49")
    a("v_add_u32 v11, s46, v1")
    a("v_bfe_u32 v12, v0, 5, 1")
    a("v_lshlrev_b32 v12, 9, v12")
    a("v_lshl_add_u32 v12, v8, 4, v12")
    a("v_bfe_u32 v13, v0, 4, 1")
    a("v_lshl_add_u32 v12, v13, 3, v12")
    a("v_mul_u32_u24 v13, 1152, v8")
    a("v_lshl_add_u32 v13, v9, 3, v13")
    a("s_mul_i32 s40, s52, 36864")
    a("s_mul_i32 s46, s39, 9216")
    a("s_add_u32 s40, s40, s46")
    a("s_and_b32 s31, s31, 0xffff")
    a(f"s_mul_i32 s42, s52, {32*1152}")
    a("s_mul_i32 s46, s39, 288")
    a("s_add_u32 s42, s42, s46")
    a(f"s_add_u32 s46, s40, {L0+LSTRIDE+XA}")
    a("s_cmp_eq_u32 s51, 0")
    a("s_cselect_b32 s8, s4, s30")
    a("s_cselect_b32 s9, s5, s31")
    a(f"s_cselect_b32 s10, s6, {XBYTES}")
    a("s_mov_b32 s11, 0x20000")
    a("s_cselect_b32 s42, s46, s42")
    a("s_cselect_b32 s56, 1024, 32")
    a(f"s_cselect_b32 s63, 0x100, {16*1152}" if False else "s_cselect_b32 s63, 0, 1")
    a("s_cselect_b64 vcc, -1, 0")
    a("v_cndmask_b32 v13, v13, v12, vcc")
    a(f"s_mul_i32 s63, s63, {16*1152-256}")
    a("s_add_u32 s63, s63, 256")
    a(f"s_add_u32 s40, s40, {X1}")
    a("s_add_u32 s40, s40, s50")

    def bu(c):
        def f(n):
            if n % 4:
                return None
            i = c * 9 + n // 4

            def g(a):
                assert not any(isinstance(it, tuple) and it[1] == ("x", i) for it in pend)
                a.wait_vm(("x", i))
            return g
        return f

    ch = [chunk_steps(c, lambda n, c=c: (c * 9 + n // 4, ACC[n % 4], c == 0 and n < 4), bu(c)) for c in range(4)]
    for c in range(4, 9):
        ch.append(chunk_steps(c, lambda n, c=c: (n, ACC[c], n == 0), extra_wait=[("st", 4)] if c == 7 else None))
    ch.append([])
    for k in range(AH):
        issue_read(a, ch[0][k])
    a.stamp(2)
    for c in range(4):
        fl = {}
        for gidx in range(0, 72):
            if gidx % 2 == 0 or (c == 0 and gidx < 40):
                fl[gidx] = [lambda a: issue(1)]
        if c >= 2:
            pend.extend(dma_grp(c + 2))
        run_steps(a, ch[c], ch[c + 1], fl, AH)
    assert not pend
    a.stamp(3)

    def flag(stage):
        return (f"buffer_store_dword v7, v6, s[4:7], s53 offen offset:{16*stage} sc1", "flag")

    def rload(k, t):
        r = RP + ((k - 1) * 6 + t) * 4
        if t < 4:
            return (f"s_add_u32 s46, s{57+k}, s62\n" if False else "") + "", r
        return None

    def rl(k, t):
        r = RP + ((k - 1) * 6 + t) * 4

        def f(a):
            if t < 4:
                a(f"s_add_u32 s46, s{57+k}, s62")
                if t >= 2:
                    a("s_add_u32 s46, s46, 8192")
                a(f"buffer_load_dwordx4 v[{r}:{r+3}], v1, s[4:7], s46 offen offset:{(t&1)*1024} sc1", tag=("rp", k))
            else:
                a(f"s_add_u32 s46, s{57+k}, {8*8192}")
                a(f"buffer_load_dwordx4 v[{r}:{r+3}], v11, s[4:7], s46 offen offset:{(t&1)*1024} sc1", tag=("rp", k))
        return f

    def resl(t):
        def f(a):
            if t < 4:
                a("s_lshr_b32 s46, s62, 3")
                a("s_add_u32 s46, s46, s40")
                a(f"buffer_load_dwordx2 v[{RES+2*t}:{RES+2*t+1}], v12, s[4:7], s46 offen offset:{(t>>1)*1024+(t&1)*256}", tag="res")
            else:
                a("s_add_u32 s46, s40, 8192")
                a(f"buffer_load_dwordx2 v[{RES+2*t}:{RES+2*t+1}], v12, s[4:7], s46 offen offset:{(t&1)*256}", tag="res")
        return f

    def spin(tagname, stage):
        def f(a):
            a.wait_vm(tagname)
            save = list(a.vm)
            a("s_mov_b32 s47, 0")
            a.label(f"B2_spin{stage}")
            if stage == 0:
                a("v_and_b32 v220, v220, v221")
                a("v_and_b32 v222, v222, v223")
                a("v_and_b32 v220, v220, v222")
            a("v_readfirstlane_b32 s48, v220")
            a("s_cmp_eq_u32 s48, 1")
            a(f"s_cbranch_scc1 B2_ok{stage}")
            a("s_add_u32 s47, s47, 1")
            a("s_cmp_gt_u32 s47, 0x40000")
            a(f"s_cbranch_scc1 B2_ok{stage}")
            a(fload(stage, None)[0])
            a("s_waitcnt vmcnt(0)")
            a(f"s_branch B2_spin{stage}")
            a.label(f"B2_ok{stage}")
            a.vm = save
        return f

    def fload(stage, tagname):
        if stage == 0:
            return ("buffer_load_dwordx4 v[220:223], v10, s[4:7], s53 offen sc1", tagname)
        return ("buffer_load_dword v220, v14, s[4:7], s53 offen offset:16 sc1", tagname)

    for c in range(4, 9):
        fl = {}
        if c == 4:
            spread(sum((store_list(p) for p in range(4)), []), 4, 56, fl)
        elif c < 8:
            spread(store_list(c - 1), 6, 16, fl)
        if c + 2 < 9:
            spread(dma_grp(c + 2), 1, 60, fl)
        if c == 6:
            fl.setdefault(2 * (36 - AH) + 2, []).append(flag(0))
        if c == 7:
            spread([resl(t) for t in range(6)], 20, 56, fl)
        if c == 8:
            fl.setdefault(0, []).append(fload(0, "f0"))
            fl.setdefault(14, []).append(lambda a: (a.wait_vm(("st", 6)), a("s_barrier")))
            fl[14].append(flag(1))
            fl.setdefault(24, []).append(spin("f0", 0))
            early = [rl(k, t) for k in (3, 2) for t in range(6)] + [rl(1, 4), rl(1, 5)]
            spread(early, 25, 66, fl)
            fl.setdefault(68, []).append(fload(1, "f1"))
        run_steps(a, ch[c], ch[c + 1], fl, AH)
    a.stamp(4)
    spin("f1", 1)(a)
    a.stamp(5)
    for t in range(4):
        rl(1, t)(a)
    for r in range(8):
        a(f"v_mov_b32 v{XV+(r>>2)*12+8+(r&3)}, 0")

    def fin(t, last):
        X = (ACC[7], ACC[7] + 4, ACC[8], ACC[8] + 4, ACC[0], ACC[0] + 4)[t]
        p1, p2, p3 = (RP + (k * 6 + t) * 4 for k in range(3))
        for r in range(4):
            a(f"v_add_f32 v{p2+r}, v{p2+r}, v{p3+r}")
            a(f"v_add_f32 v{X+r}, v{X+r}, v{p2+r}")
        if last:
            a.wait_vm(("rp", 1))
        for r in range(4):
            a(f"v_add_f32 v{X+r}, v{X+r}, v{p1+r}")
        a(f"v_cvt_pk_bf16_f32 v{p1}, v{X}, v{X+1}")
        a(f"v_cvt_pk_bf16_f32 v{p1+1}, v{X+2}, v{X+3}")
        for hf in range(2):
            a(f"v_lshlrev_b32 v{X+2*hf}, 16, v{p1+hf}")
            a(f"v_and_b32 v{X+2*hf+1}, 0xffff0000, v{p1+hf}")
            a(f"v_lshlrev_b32 v{p2+2*hf}, 16, v{RES+2*t+hf}")
            a(f"v_and_b32 v{p2+2*hf+1}, 0xffff0000, v{RES+2*t+hf}")
        for r in range(4):
            a(f"v_add_f32 v{X+r}, v{X+r}, v{p2+r}")
        a(f"v_cvt_pk_bf16_f32 v{p1}, v{X}, v{X+1}")
        a(f"v_cvt_pk_bf16_f32 v{p1+1}, v{X+2}, v{X+3}")
        if t < 4:
            a(f"s_lshl_b32 s46, s57, 1")
            if t >> 1:
                a("s_add_u32 s46, s46, 1")
            a("s_mul_i32 s46, s46, s56")
        else:
            a("s_lshl_b32 s46, s56, 3")
        a("s_add_u32 s46, s46, s42")
        if t & 1:
            a("s_add_u32 s46, s46, s63")
        a(f"buffer_store_dwordx2 v[{p1}:{p1+1}], v13, s[8:11], s46 offen")
        xv = XV + (t & 1) * 12 + (t >> 1) * 4
        for hf in range(2):
            a(f"v_lshlrev_b32 v{xv+2*hf}, 16, v{p1+hf}")
            a(f"v_and_b32 v{xv+2*hf+1}, 0xffff0000, v{p1+hf}")

    a("s_waitcnt vmcnt(4)")
    a("s_cmp_lg_u32 s3, s57")
    a("s_cbranch_scc1 B2_no8")
    save = list(a.vm)
    fin(4, False)
    fin(5, False)
    a("s_waitcnt vmcnt(2)")
    a("s_branch B2_go")
    a.label("B2_no8")
    a("s_waitcnt vmcnt(0)")
    a.label("B2_go")
    for t in range(4):
        fin(t, False)
    a("s_cmp_lg_u32 s51, 0")
    a("s_cbranch_scc1 B2_nostat")
    a(f"s_mov_b32 s47, {f2u(1/8)}")
    a(f"s_mov_b32 s48, {f2u(4.0)}")
    a(f"s_mov_b32 s49, {f2u(8.0)}")
    a("s_mov_b32 s46, 0")
    a("s_cmp_eq_u32 s3, s57")
    a(f"s_cselect_b32 s47, {f2u(1/12)}, s47")
    a(f"s_cselect_b32 s48, {f2u(6.0)}, s48")
    a(f"s_cselect_b32 s49, {f2u(12.0)}, s49")
    a("s_cselect_b32 s46, 1.0, s46")
    for u in range(2):
        b = XV + u * 12
        mu, m2, t0 = 16 + u * 2, 17 + u * 2, 24
        a(f"v_add_f32 v{mu}, v{b}, v{b+1}")
        for r in range(2, 12):
            a(f"v_add_f32 v{mu}, v{mu}, v{b+r}")
        a(f"v_mul_f32 v{mu}, s47, v{mu}")
        a(f"v_mov_b32 v{m2}, 0")
        a(f"v_mov_b32 v{t0}, 0")
        for r in range(12):
            a(f"v_sub_f32 v{b+r}, v{b+r}, v{mu}")
            a(f"v_fmac_f32 v{m2 if r < 8 else t0}, v{b+r}, v{b+r}")
        a(f"v_fmac_f32 v{m2}, s46, v{t0}")
        chan_q(a, f"v{mu}", f"v{m2}", "v2", "v3", ["s48", "s49"])
    a("s_lshl_b32 s46, s52, 12")
    a("s_lshl_b32 s47, s39, 5")
    a("s_add_u32 s46, s46, s47")
    a("s_lshl_b32 s47, s57, 3")
    a("s_add_u32 s46, s46, s47")
    a(f"s_add_u32 s46, s46, {L0+LSTRIDE+STA}")
    a("v_lshlrev_b32 v8, 7, v0")
    setexec(a, 0xFFFF)
    a("buffer_store_dwordx2 v[16:17], v8, s[4:7], s46 offen")
    a("buffer_store_dwordx2 v[18:19], v8, s[4:7], s46 offen offset:2048")
    a.label("B2_nostat")
    a.stamp(1)
    if Asm.STAMPS:
        a("s_waitcnt vmcnt(0)")
    a.stamp(6)
    a.stamp(9, True)
    a.stamp_dump(3, vtmp=24)
    a.label("B2_end")
    a("s_endpgm")
    return [dict(name=n, grid=256, block=256, lds=B2_LDS, vgpr=256, agpr=256) for n in names]
```

```python
from asmlib import *
from layout import *
from gen_p0 import prologue, mksrd, f2u, sdivmod
import math

LOG2E = math.log2(math.e)


def entries(a, base, common):
    names = []
    for l in range(2):
        nm = f"{base}{'ab'[l]}_kernel"
        a.raw(kernel_header(nm))
        a(f"s_mov_b32 s50, {L0 + l*LSTRIDE}")
        a(f"s_mov_b32 s51, {l}")
        if l == 0:
            a(f"s_branch {common}")
        names.append(nm)
    a.label(common)
    a.hist = []
    a.vm = []
    a.lg = []
    return names


def rnd(a, dst, src):
    a(f"v_cvt_pk_bf16_f32 {dst}, {src}, {src}")
    a(f"v_lshlrev_b32 {dst}, 16, {dst}")


def stats_combine(a, r0, counts, t0, t1, negm_pk, s_out, xch=()):
    n = len(counts)
    N = D
    lit = not isinstance(counts[0], str)

    def xsum(v):
        for op in xch:
            a(f"v_mov_b32 {s_out}, {v}")
            a(f"{op} {v}, {s_out}")
            a(f"v_add_f32 {v}, {v}, {s_out}")

    if lit:
        a(f"v_mul_f32 {t0}, {f2u(counts[0]/N)}, v{r0}")
        for j in range(1, n):
            a(f"v_fmamk_f32 {t0}, v{r0+2*j}, {f2u(counts[j]/N)}, {t0}")
    else:
        a(f"v_mul_f32 {t0}, {counts[0]}, v{r0}")
        for j in range(1, n):
            a(f"v_fmac_f32 {t0}, {counts[j]}, v{r0+2*j}")
        a(f"v_mul_f32 {t0}, {f2u(1.0/N)}, {t0}")
    xsum(t0)
    a(f"v_mov_b32 {t1}, v{r0+1}")
    for j in range(1, n):
        a(f"v_add_f32 {t1}, {t1}, v{r0+2*j+1}")
    for j in range(n):
        a(f"v_sub_f32 v{r0+2*j}, v{r0+2*j}, {t0}")
        a(f"v_mul_f32 v{r0+2*j}, v{r0+2*j}, v{r0+2*j}")
        if lit:
            a(f"v_fmamk_f32 {t1}, v{r0+2*j}, {f2u(float(counts[j]))}, {t1}")
        else:
            a(f"v_fmac_f32 {t1}, {counts[j]}, v{r0+2*j}")
    xsum(t1)
    a(f"v_mul_f32 {t1}, {f2u(1.0/N)}, {t1}")
    a(f"v_cvt_pk_bf16_f32 {negm_pk}, -{t0}, -{t0}")
    rnd(a, t1, t1)
    a(f"v_add_f32 {t1}, {f2u(1e-5)}, {t1}")
    rnd(a, t1, t1)
    a(f"v_sqrt_f32 {t1}, {t1}")
    rnd(a, s_out, t1)


def phi_pair(a, x0, x1, r0, r1, e0, e1, dst, t0, t1):
    a(f"v_mul_f32 {t0}, {x0}, {e0}")
    a(f"v_mul_f32 {t1}, {x1}, {e1}")
    a(f"v_exp_f32 {t0}, {t0}")
    a(f"v_exp_f32 {t1}, {t1}")
    a(f"v_cmp_lt_f32 vcc, 0, {x0}")
    a(f"v_cmp_lt_f32 s[52:53], 0, {x1}")
    a(f"v_fma_f32 {x0}, {x0}, {r0}, 1.0")
    a(f"v_fma_f32 {x1}, {x1}, {r1}, 1.0")
    a(f"v_cndmask_b32 {x0}, {t0}, {x0}, vcc")
    a(f"v_cndmask_b32 {x1}, {t1}, {x1}, s[52:53]")
    a(f"v_add_f32 {x0}, {f2u(1e-6)}, {x0}")
    a(f"v_add_f32 {x1}, {f2u(1e-6)}, {x1}")
    a(f"v_cvt_pk_bf16_f32 {dst}, {x0}, {x1}")


def setexec(a, mask):
    a(f"s_mov_b32 exec_lo, 0x{mask & 0xffffffff:x}")
    a(f"s_mov_b32 exec_hi, 0x{mask >> 32:x}")


def lanemask(fn):
    m = 0
    for l in range(64):
        if fn(l & 15, l >> 4):
            m |= 1 << l
    return m


K1_OP = 136 * KB
K1_RS = K1_OP + 20 * KB
K1_LDS = K1_RS + 1024


def gen_k1(a):
    names = entries(a, "k1", "K1_main")
    prologue(a, 256, "K1_end")
    a.stamp(0)
    a.stamp(8, True)
    XR, MR, AC, WB = 16, 88, 92, 124
    RS = 180
    a("v_and_b32 v5, 15, v0")
    a("v_lshrrev_b32 v6, 4, v0")
    a("s_and_b32 s36, s2, 7")
    a("s_lshr_b32 s37, s2, 3")
    a("s_and_b32 s38, s36, 3")
    a("s_lshl_b32 s38, s38, 2")
    a("s_and_b32 s39, s37, 3")
    a("s_add_u32 s38, s38, s39")
    a("s_lshr_b32 s39, s36, 2")
    a("s_lshl_b32 s39, s39, 3")
    a("s_lshr_b32 s40, s37, 2")
    a("s_add_u32 s39, s39, s40")
    a("s_lshr_b32 s40, s3, 1")
    a("s_lshl_b32 s41, s38, 2")
    a("s_add_u32 s41, s41, s40")
    a("s_and_b32 s47, s3, 1")
    a(f"s_mul_i32 s43, s39, {133*KB}")
    a(f"s_add_u32 s43, s43, {WQKV}")
    a("s_lshl_b32 s44, s3, 10")
    a("v_lshl_add_u32 v8, v0, 4, s44")
    a("s_mov_b32 m0, s44")
    a("s_mul_i32 s45, s41, 36864")
    a("s_lshl_b32 s46, s47, 8")
    a("s_add_u32 s45, s45, s46")
    a(f"s_add_u32 s45, s45, {XA}")
    a("s_add_u32 s45, s45, s50")
    a("v_lshlrev_b32 v9, 4, v5")
    a("v_lshl_add_u32 v9, v6, 9, v9")
    a("s_lshl_b32 s42, s41, 12")
    a("s_lshl_b32 s46, s47, 11")
    a("s_add_u32 s42, s42, s46")
    a(f"s_add_u32 s42, s42, {STA}")
    a("s_add_u32 s42, s42, s50")
    a("v_lshlrev_b32 v7, 7, v5")
    a("v_lshl_add_u32 v7, v6, 5, v7")
    for p in range(4):
        a(f"s_mov_b32 s{12+p}, {f2u(32.0)}")
        a(f"s_cmp_eq_u32 s40, {p}")
        a(f"s_cselect_b32 s{12+p}, {f2u(48.0)}, s{12+p}")
    chunks = [(0, 2), (2, 5), (5, 9), (9, 14), (14, 19)]
    pend = []
    rounds = 0
    for ci, (k0, k1) in enumerate(chunks):
        need = (k1 * 7 + 7) // 8
        while rounds < need:
            t = "buffer_load_dwordx4 v8, s[4:7], s43 offen lds"
            rounds += 1
            if rounds < 17:
                t += "\ns_add_u32 s43, s43, 8192\ns_add_u32 m0, m0, 8192"
            pend.append((t, ("w", ci)))
        for ks in range(k0, min(k1, 18)):
            r = XR + ks * 4
            t = f"buffer_load_dwordx4 v[{r}:{r+3}], v9, s[4:7], s45 offen offset:{(ks&1)*2048}"
            if ks & 1:
                t += "\ns_add_u32 s45, s45, 4096"
            pend.append((t, ("x", ks)))
        if ci == 2:
            for h in range(2):
                pend.append((f"buffer_load_dwordx4 v[{192+h*4}:{195+h*4}], v7, s[4:7], s42 offen offset:{h*16}", "stat"))

    def issue(n):
        while pend and n > 0:
            t, tag = pend.pop(0)
            lines = t.split("\n")
            a(lines[0], tag=tag)
            for l in lines[1:]:
                a(l)
            n -= 1

    issue(12)
    allm = (1 << 64) - 1
    par = [
        (2, 0, allm, 0, 0),
        (3, 1, allm, KVHEAD + 8, 0),
        (2, 4, lanemask(lambda i, q: i < 2), 64, 0),
        (3, 4, lanemask(lambda i, q: i in (2, 3)), 64 + KVHEAD, 0),
        (4, 0, lanemask(lambda i, q: q == 1), 12 * KVROW, 0),
        (4, 1, lanemask(lambda i, q: q == 2), 8 * KVROW + KVHEAD + 8, 0),
        (4, 4, lanemask(lambda i, q: (q == 1 and i < 2) or (q == 2 and i in (2, 3))), 12 * KVROW + 64, KVHEAD - 4 * KVROW),
    ]
    a("s_lshl_b32 s46, s3, 2")
    a(f"s_lshr_b32 s54, 0x{sum(p[0] << (4*i) for i, p in enumerate(par)):x}, s46")
    a("s_and_b32 s54, s54, 7")
    a("s_lshl_b32 s54, s54, 12")
    a(f"s_lshr_b32 s55, 0x{sum(p[1] << (4*i) for i, p in enumerate(par)):x}, s46")
    a("s_and_b32 s55, s55, 7")
    a("s_lshl_b32 s55, s55, 12")
    a("s_mov_b64 s[56:57], -1")
    a("s_mov_b32 s58, 0")
    a("s_mov_b32 s59, 0")
    for i, p in enumerate(par):
        if i == 0:
            continue
        a(f"s_cmp_eq_u32 s3, {i}")
        if p[2] != allm:
            a(f"s_cselect_b32 s56, 0x{p[2] & 0xffffffff:x}, s56")
            a(f"s_cselect_b32 s57, 0x{p[2] >> 32:x}, s57")
        a(f"s_cselect_b32 s58, {p[3]}, s58")
        if p[4]:
            a(f"s_cselect_b32 s59, {p[4]}, s59")
    a("v_lshlrev_b32 v14, 4, v0")
    a("v_add_u32 v15, 0x10000, v14")
    a("v_add_u32 v4, 0x20000, v14")
    sets = [(0, 1), (1, 1), (2, 1), (3, 1), (4, 1), (4, 0), (5, 0), (6, 0)]

    def reads(ks):
        st = ks & 1
        for t in range(7):
            off = (ks * 7 + t) * 1024
            base = ("v14", "v15", "v4")[off >> 16]
            r = WB + st * 28 + t * 4
            a(f"ds_read_b128 v[{r}:{r+3}], {base} offset:{off & 65535}", tag=("wr", ks, t))

    def do_stats():
        a.wait_vm("stat")
        stats_combine(a, 192, ["s12", "s13", "s14", "s15"], "v10", "v11", f"v{MR}", "v12", xch=["v_permlane16_swap_b32", "v_permlane32_swap_b32"])
        a("v_rcp_f32 v12, v12")
        for r in range(1, 4):
            a(f"v_mov_b32 v{MR+r}, v{MR}")
        a(f"v_mul_f32 v13, {f2u(LOG2E)}, v12")
        a("s_lshl_b32 s46, s3, 7")
        a(f"s_add_u32 s46, s46, {K1_RS}")
        a("v_lshl_add_u32 v10, v5, 2, s46")
        a("ds_write_b32 v10, v12", tag="rs")
        a("ds_write_b32 v10, v13 offset:64", tag="rs")
        a("v_lshl_add_u32 v10, v6, 4, s46")

    starts = {k0: ci for ci, (k0, k1) in enumerate(chunks)}
    a.wait_vm(("w", 0))
    a("s_barrier")
    a.stamp(1)
    reads(0)
    for ks in range(19):
        if ks + 1 < 19:
            if ks + 1 in starts:
                assert not any(t[1] == ("w", starts[ks + 1]) for t in pend)
                a.wait_vm(("w", starts[ks + 1]))
                a("s_barrier")
            reads(ks + 1)
        if ks < 18:
            assert not any(t[1] == ("x", ks) for t in pend)
            a.wait_vm(("x", ks))
        st = ks & 1
        for si, (t, tm) in enumerate(sets):
            a.wait_lg(("wr", ks, t))
            w = WB + st * 28 + t * 4
            x = XR + ks * 4 if ks < 18 else MR
            c = AC + si * 4
            cin = f"v[{c}:{c+3}]" if ks else "0"
            if tm:
                a(f"v_mfma_f32_16x16x32_bf16 v[{c}:{c+3}], v[{x}:{x+3}], v[{w}:{w+3}], {cin}")
            else:
                a(f"v_mfma_f32_16x16x32_bf16 v[{c}:{c+3}], v[{w}:{w+3}], v[{x}:{x+3}], {cin}")
            if si in (1, 4, 6):
                issue(1)
        if ks == 15:
            do_stats()
        if ks == 16:
            a.wait_lg("rs")
            a(f"ds_read_b128 v[{RS}:{RS+3}], v10", tag="rs2")
            a(f"ds_read_b128 v[{RS+4}:{RS+7}], v10 offset:64", tag="rs2")
    assert not pend
    a.stamp(2)
    OP = 16
    a.wait_lg("rs2")
    for t in (2, 3, 4):
        c = AC + t * 4
        d = OP + 2 * t if t < 4 else 30
        for h in range(2):
            a(f"v_mul_f32 v10, v{c+2*h}, v{RS+2*h}")
            a(f"v_mul_f32 v11, v{c+2*h+1}, v{RS+2*h+1}")
            a(f"v_cvt_pk_bf16_f32 v{d+h}, v10, v11")
    for t in (0, 1, 4):
        c = AC + t * 4
        for h in range(2):
            phi_pair(a, f"v{c+2*h}", f"v{c+2*h+1}", f"v{RS+2*h}", f"v{RS+2*h+1}", f"v{RS+4+2*h}", f"v{RS+5+2*h}", f"v{OP+2*t+h}", "v10", "v11")
    a("v_mov_b32 v10, 0x3f803f80")
    m_phi = lanemask(lambda i, q: i < 4)
    m_one = lanemask(lambda i, q: i in (6, 10))
    a(f"s_mov_b32 s52, 0x{m_phi & 0xffffffff:x}")
    a(f"s_mov_b32 s53, 0x{m_phi >> 32:x}")
    a(f"s_mov_b32 vcc_lo, 0x{m_one & 0xffffffff:x}")
    a(f"s_mov_b32 vcc_hi, 0x{m_one >> 32:x}")
    for r in range(2):
        a(f"v_cndmask_b32 v{OP+8+r}, v{30+r}, v{OP+8+r}, s[52:53]")
        a(f"v_cndmask_b32 v{OP+8+r}, v{OP+8+r}, v10, vcc")
    a("s_lshl_b32 s46, s40, 10")
    a("s_lshl_b32 s48, s47, 3")
    a("s_add_u32 s46, s46, s48")
    a(f"s_add_u32 s46, s46, {K1_OP}")
    a("v_add_u32 v10, s46, v14")
    for t in range(5):
        a(f"ds_write_b64 v10, v[{OP+2*t}:{OP+2*t+1}] offset:{t*4096}")
    a(f"s_mul_i32 s46, s39, {2*KVHEAD}")
    a(f"s_add_u32 s46, s46, {KV}")
    a("s_add_u32 s46, s46, s50")
    a("s_add_u32 s8, s34, s46")
    a("s_addc_u32 s9, s35, 0")
    a("s_and_b32 s9, s9, 0xffff")
    a(f"s_movk_i32 s10, {2*KVHEAD}")
    a("s_mov_b32 s11, 0x20000")
    a(f"v_mul_u32_u24 v11, {4*KVROW}, v6")
    a("v_lshl_add_u32 v11, v5, 2, v11")
    a("v_mov_b32 v2, s59")
    a("v_cmp_eq_u32 vcc, 2, v6")
    a("v_cndmask_b32 v2, 0, v2, vcc")
    a("v_add3_u32 v11, v11, v2, s58")
    a(f"v_add_u32 v2, {K1_OP}, v14")
    a("v_add_u32 v3, s55, v2")
    a("v_add_u32 v2, s54, v2")
    a("s_waitcnt lgkmcnt(0)")
    a("s_barrier")
    a.stamp(3)
    a("s_cmp_eq_u32 s3, 7")
    a("s_cbranch_scc1 K1_q")
    for g in range(4):
        a(f"ds_read_b128 v[{32+g*8}:{35+g*8}], v2 offset:{g*1024}", tag=("o", g))
        a(f"ds_read_b128 v[{36+g*8}:{39+g*8}], v3 offset:{g*1024}", tag=("o", g))
    for g in range(4):
        a.wait_lg(("o", g))
        a(f"v_mfma_f32_16x16x32_bf16 v[64:67], v[{32+g*8}:{35+g*8}], v[{36+g*8}:{39+g*8}], {'v[64:67]' if g else '0'}")
    a("s_mov_b64 exec, s[56:57]")
    for r in range(4):
        a(f"buffer_atomic_add_f32 v{64+r}, v11, s[8:11], 0 offen offset:{r*KVROW}")
    a("s_mov_b64 exec, -1")
    a.label("K1_q")
    a.stamp(4)
    a("s_lshl_b32 s46, s41, 4")
    a("s_add_u32 s46, s46, s39")
    a("s_mul_i32 s46, s46, 2560")
    a("s_lshl_b32 s48, s47, 8")
    a("s_add_u32 s46, s46, s48")
    a(f"s_add_u32 s46, s46, {PQ}")
    a("s_add_u32 s46, s46, s50")
    a("v_lshrrev_b32 v7, 1, v6")
    a("v_lshlrev_b32 v7, 9, v7")
    a("v_lshl_add_u32 v7, v5, 4, v7")
    a("v_and_b32 v8, 1, v6")
    a("v_lshl_add_u32 v7, v8, 3, v7")
    a("v_xor_b32 v8, 8, v7")
    for si in (6, 7, 5):
        c = AC + si * 4
        d = 68 + (si - 5) * 2
        for h in range(2):
            phi_pair(a, f"v{c+2*h}", f"v{c+2*h+1}", "v12", "v12", "v13", "v13", f"v{d+h}", "v10", "v11")
        if si != 5:
            a(f"buffer_store_dwordx2 v[{d}:{d+1}], v7, s[4:7], s46 offen offset:{(si-6)*1024} sc1")
        else:
            setexec(a, lanemask(lambda i, q: q >= 2))
            a(f"buffer_store_dwordx2 v[{d}:{d+1}], v8, s[4:7], s46 offen offset:{3*512} sc1")
    a.stamp(5)
    if Asm.STAMPS:
        a("s_waitcnt vmcnt(0)")
    a.stamp(6)
    a.stamp(7)
    a.stamp(9, True)
    a.stamp_dump(0, vtmp=40)
    a.label("K1_end")
    a("s_endpgm")
    return [dict(name=n, grid=256, block=512, lds=K1_LDS, vgpr=200, agpr=0) for n in names]
```

```python
from asmlib import *
from layout import *


def magic(d):
    return (1 << 32) // d + 1


def sdivmod(a, q, r, x, d, tmp):
    a(f"s_mov_b32 {tmp}, {magic(d)}")
    a(f"s_mul_hi_u32 {q}, {x}, {tmp}")
    a(f"s_mul_i32 {tmp}, {q}, {d}")
    a(f"s_sub_u32 {r}, {x}, {tmp}")


def prologue(a, nwg, endlabel):
    a(f"s_cmp_ge_u32 s2, {nwg}")
    a(f"s_cbranch_scc1 {endlabel}")
    a("s_load_dwordx16 s[16:31], s[0:1], 0")
    a("s_load_dwordx4 s[32:35], s[0:1], 64")
    a("v_lshrrev_b32 v1, 6, v0")
    a("v_and_b32 v0, 63, v0")
    a("v_readfirstlane_b32 s3, v1")
    a("s_waitcnt lgkmcnt(0)")
    a("s_mov_b32 s4, s34")
    a("s_and_b32 s5, s35, 0xffff")
    a(f"s_mov_b32 s6, {WS_BYTES}")
    a("s_mov_b32 s7, 0x20000")


def mksrd(a, d, lo, hi, nbytes):
    a(f"s_mov_b32 s{d}, {lo}")
    a(f"s_and_b32 s{d+1}, {hi}, 0xffff")
    a(f"s_mov_b32 s{d+2}, {nbytes}")
    a(f"s_mov_b32 s{d+3}, 0x20000")


def split3(a, x, t0, t1, o0, o1):
    a(f"v_cvt_pk_bf16_f32 {t0}, {x}, 0")
    a(f"v_lshlrev_b32 {t1}, 16, {t0}")
    a(f"v_sub_f32 {x}, {x}, {t1}")
    a(f"v_cvt_pk_bf16_f32 {t1}, {x}, 0")
    a(f"v_lshl_or_b32 {o0}, {t1}, 16, {t0}")
    a(f"v_lshlrev_b32 {t1}, 16, {t1}")
    a(f"v_sub_f32 {x}, {x}, {t1}")
    a(f"v_cvt_pk_bf16_f32 {o1}, {x}, 0")


NA, NB, NC, ND, NE, NZ = 432, 216, 96, 36, 64, 8
P0_WGS = NA + NB + NC + ND + NE + NZ
STORE_MOD = "sc1"
import os
LOAD_MOD = os.environ.get("P0_LOAD", "nt")


def endp(a):
    if Asm.STAMPS:
        a("s_branch P0_end")
    else:
        a("s_endpgm")


def gen_p0(a, name="p0_kernel"):
    a.raw(kernel_header(name))
    prologue(a, P0_WGS, "P0_exit")
    a.stamp(8, True)
    a("v_and_b32 v5, 15, v0")
    a("v_lshrrev_b32 v6, 4, v0")
    a("s_mov_b32 s61, s2")
    a(f"s_add_u32 s2, s2, {NA+NB}")
    a(f"s_cmp_ge_u32 s2, {P0_WGS}")
    a(f"s_cselect_b32 s36, {P0_WGS}, 0")
    a("s_sub_u32 s2, s2, s36")
    a(f"s_cmp_ge_u32 s2, {NA}")
    a("s_cbranch_scc1 P0_notA")
    sdivmod(a, "s36", "s37", "s2", 144, "s38")
    sdivmod(a, "s39", "s40", "s37", 72, "s38")
    a("s_cmp_eq_u32 s39, 0")
    a("s_cselect_b32 s8, s24, s26")
    a("s_cselect_b32 s9, s25, s27")
    a("s_and_b32 s9, s9, 0xffff")
    a(f"s_mov_b32 s10, {D*F*2}")
    a("s_mov_b32 s11, 0x20000")
    a(f"s_mov_b32 s12, {F*2}")
    a("s_mul_i32 s15, s36, 24")
    a("s_mul_i32 s38, s3, 6")
    a("s_add_u32 s15, s15, s38")
    a(f"s_mul_i32 s13, s15, {8*F*2}")
    a("s_lshl_b32 s38, s40, 7")
    a("v_lshrrev_b32 v7, 3, v0")
    a(f"v_mul_u32_u24 v1, {F*2}, v7")
    a("v_and_b32 v7, 7, v0")
    a("v_lshl_add_u32 v1, v7, 4, v1")
    a("v_add_u32 v1, s38, v1")
    a("v_and_b32 v7, 1, v0")
    a("v_bfe_u32 v8, v0, 1, 1")
    a("v_lshl_or_b32 v82, v7, 1, v8")
    a("s_lshl_b32 s38, s40, 2")
    a("v_add_u32 v7, s38, v6")
    a(f"s_mov_b32 s38, {36*KB}")
    a("v_mul_lo_u32 v2, v7, s38")
    a("s_lshl_b32 s41, s39, 8")
    a(f"s_add_u32 s38, s41, {WGU}")
    a("v_lshl_add_u32 v8, v5, 4, s38")
    a("v_add_u32 v2, v2, v8")
    a("v_mov_b32 v3, 0x800")
    a("s_movk_i32 s14, 0x200")
    a("s_lshr_b32 s38, s36, 1")
    a("s_lshl_b32 s38, s38, 9")
    a("s_add_u32 s38, s38, s41")
    a("s_and_b32 s42, s36, 1")
    a("s_lshl_b32 s42, s42, 3")
    a("s_add_u32 s38, s38, s42")
    a(f"s_add_u32 s38, s38, {CSGU}")
    a("v_lshl_add_u32 v8, v5, 4, s38")
    a("v_lshl_add_u32 v80, v7, 10, v8")
    a("s_mov_b32 s43, 1")
    a("s_branch P0_tr")
    a.label("P0_notA")
    a(f"s_cmp_ge_u32 s2, {NA+NB}")
    a("s_cbranch_scc1 P0_notB")
    a(f"s_sub_u32 s37, s2, {NA}")
    sdivmod(a, "s39", "s40", "s37", 9, "s38")
    mksrd(a, 8, "s28", "s29", D * F * 2)
    a(f"s_movk_i32 s12, {D*2}")
    a("s_mul_i32 s15, s39, 24")
    a("s_mul_i32 s38, s3, 6")
    a("s_add_u32 s15, s15, s38")
    a(f"s_mul_i32 s13, s15, {8*D*2}")
    sdivmod(a, "s41", "s15", "s15", 144, "s38")
    a("s_lshl_b32 s38, s40, 7")
    a("v_lshrrev_b32 v7, 3, v0")
    a(f"v_mul_u32_u24 v1, {D*2}, v7")
    a("v_and_b32 v7, 7, v0")
    a("v_lshl_add_u32 v1, v7, 4, v1")
    a("v_add_u32 v1, s38, v1")
    a("v_and_b32 v82, 3, v0")
    a("s_lshl_b32 s38, s40, 2")
    a("v_add_u32 v7, s38, v6")
    a("v_mul_u32_u24 v8, 57, v7")
    a("v_lshrrev_b32 v8, 9, v8")
    a("v_mul_u32_u24 v9, 9, v8")
    a("v_sub_u32 v9, v7, v9")
    a("v_lshrrev_b32 v10, 1, v9")
    a("s_add_u32 s38, s41, 1")
    a("v_subrev_u32 v10, s38, v10")
    a("v_and_b32 v10, 3, v10")
    a("v_and_b32 v11, 1, v9")
    a("v_lshl_add_u32 v10, v10, 1, v11")
    a("v_add_u32 v10, 1, v10")
    a("v_cmp_eq_u32 vcc, 8, v9")
    a("v_cndmask_b32 v9, v10, 0, vcc")
    a("v_mul_u32_u24 v10, 36, v9")
    a(f"v_cmp_gt_u32 vcc, {UA}, v9")
    a("v_cndmask_b32 v10, v10, v9, vcc")
    a("v_mov_b32 v3, 0x400")
    a(f"v_mov_b32 v11, {UA*1024}")
    a("v_cndmask_b32 v3, v3, v11, vcc")
    a("s_lshl_b32 s38, s41, 2")
    a("v_add_u32 v8, s38, v8")
    a("v_mul_u32_u24 v8, 324, v8")
    a("v_add_u32 v8, v8, v10")
    a(f"s_mov_b32 s38, {WD}")
    a("v_lshl_add_u32 v9, v5, 4, s38")
    a("v_lshl_add_u32 v2, v8, 10, v9")
    a("s_movk_i32 s14, 0x100")
    a("s_mov_b32 s43, 0")
    a.label("P0_tr")
    a("s_mul_i32 s38, s3, 6144")
    a("s_add_u32 s38, s38, 1024")
    a("s_mov_b32 m0, s38")
    a("s_lshl_b32 s12, s12, 3")
    for rg in range(6):
        a(f"buffer_load_dwordx4 v1, s[8:11], s13 offen {LOAD_MOD} lds", tag=("g", rg))
        if rg < 5:
            a("s_add_u32 s13, s13, s12")
            a("s_add_u32 m0, m0, 1024")
    a("v_bfe_u32 v7, v0, 2, 2")
    a("v_lshlrev_b32 v7, 7, v7")
    a("v_lshl_add_u32 v7, v6, 5, v7")
    a("v_lshl_add_u32 v7, v82, 3, v7")
    a("v_add_u32 v7, s38, v7")
    for rg in range(6):
        a.wait_vm(("g", rg))
        a(f"ds_read_b64_tr_b16 v[{56+rg*4}:{57+rg*4}], v7 offset:{rg*1024}", tag=("t", rg))
        a(f"ds_read_b64_tr_b16 v[{58+rg*4}:{59+rg*4}], v7 offset:{rg*1024+512}", tag=("t", rg))
    a("s_waitcnt lgkmcnt(0)")
    a("s_branch P0_store")
    a.label("P0_notB")
    a(f"s_cmp_ge_u32 s2, {NA+NB+NC}")
    a("s_cbranch_scc1 P0_notC")
    a(f"s_sub_u32 s37, s2, {NA+NB}")
    a("s_lshr_b32 s36, s37, 5")
    a("s_and_b32 s40, s37, 31")
    a("s_lshr_b32 s39, s40, 1")
    mksrd(a, 8, "s18", "s19", D * 3 * D * 2)
    a(f"s_movk_i32 s12, {3*D*2}")
    a("s_mul_i32 s15, s36, 24")
    a("s_mul_i32 s38, s3, 6")
    a("s_add_u32 s15, s15, s38")
    a(f"s_mul_i32 s13, s15, {8*3*D*2}")
    a("s_mul_i32 s41, s39, 36")
    a("v_lshrrev_b32 v7, 1, v6")
    a("v_mul_u32_u24 v7, 576, v7")
    a("v_and_b32 v8, 1, v6")
    a("v_mad_u32_u24 v7, v8, 18, v7")
    a("v_add3_u32 v7, v7, v5, 64")
    a("v_add_u32 v7, 512, v7")
    a("v_and_b32 v9, 1, v5")
    a("v_bfe_u32 v8, v5, 1, 1")
    a("v_mad_u32_u24 v8, v8, 18, v9")
    a("v_add_u32 v8, 592, v8")
    a("v_lshrrev_b32 v10, 3, v5")
    a("v_mad_u32_u24 v10, v10, 18, v9")
    a("v_add_u32 v10, 1168, v10")
    a("v_cmp_gt_u32 vcc, 4, v5")
    a("v_cndmask_b32 v8, v10, v8, vcc")
    a("v_add_u32 v9, 20, v5")
    a("v_cmp_gt_u32 vcc, 12, v5")
    a("v_cndmask_b32 v8, v9, v8, vcc")
    a("v_lshl_add_u32 v9, v6, 4, v5")
    a("v_subrev_u32 v9, 16, v9")
    a("v_cmp_eq_u32 vcc, 0, v6")
    a("v_cndmask_b32 v8, v9, v8, vcc")
    a("s_bitcmp1_b32 s40, 0")
    a("s_cselect_b64 s[44:45], -1, 0")
    a("v_cndmask_b32 v7, v7, v8, s[44:45]")
    a("v_add_u32 v7, s41, v7")
    a("v_lshlrev_b32 v1, 1, v7")
    a("s_mov_b32 s46, 0")
    a("s_mov_b32 s47, 0xffff0000")
    a("s_and_b64 s[46:47], s[46:47], s[44:45]")
    a("s_mov_b32 vcc_lo, 0xcc0")
    a("s_mov_b32 vcc_hi, 0xffff0000")
    a("s_and_b64 vcc, vcc, s[44:45]")
    a(f"v_mov_b32 v9, {OOB}")
    a("v_cndmask_b32 v1, v1, v9, vcc")
    a("s_and_b32 s38, s40, 1")
    a("s_lshl_b32 s38, s38, 12")
    a(f"s_mul_i32 s42, s39, {133*KB}")
    a("s_add_u32 s38, s38, s42")
    a(f"s_add_u32 s38, s38, {WQKV}")
    a("v_lshl_add_u32 v2, v5, 4, s38")
    a("v_lshl_add_u32 v2, v6, 10, v2")
    a("v_cndmask_b32 v2, v2, v9, s[46:47]")
    a(f"v_mov_b32 v3, {7*KB}")
    a("s_movk_i32 s14, 0x100")
    a("s_lshl_b32 s38, s36, 8")
    a(f"s_add_u32 s38, s38, {18*7*KB}")
    a("v_add_u32 v80, s38, v2")
    a("s_mov_b32 s43, 2")
    a.label("P0_gather")
    for n in range(48):
        a(f"buffer_load_ushort v{8+n}, v1, s[8:11], s13 offen", tag=("g", n // 8))
        if n < 47:
            a("s_add_u32 s13, s13, s12")
    for rg in range(6):
        a.wait_vm(("g", rg))
        for r in range(4):
            b = 8 + rg * 8 + 2 * r
            a(f"v_lshl_or_b32 v{56+rg*4+r}, v{b+1}, 16, v{b}")
    a.label("P0_store")
    a("v_mov_b32 v81, 0")
    a("s_mov_b32 s48, 0x3f803f80")
    for rg in range(6):
        a("s_lshr_b32 s38, s15, 2")
        a("s_and_b32 s41, s15, 3")
        a("s_mul_i32 s41, s41, s14")
        a("v_mad_u32_u24 v4, s38, v3, v2")
        a("s_add_u32 s15, s15, 1")
        a(f"buffer_store_dwordx4 v[{56+rg*4}:{59+rg*4}], v4, s[4:7], s41 offen {STORE_MOD}", tag="st")
        for r in range(4):
            a(f"v_dot2_f32_bf16 v81, v{56+rg*4+r}, s48, v81")
    a("s_cmp_eq_u32 s43, 0")
    a("s_cbranch_scc1 P0_end")
    a("s_lshl_b32 s38, s3, 8")
    a("v_lshl_add_u32 v4, v0, 2, s38")
    a("ds_write_b32 v4, v81")
    a("s_waitcnt lgkmcnt(0)")
    a("s_barrier")
    a("s_cmp_lg_u32 s3, 0")
    a("s_cbranch_scc1 P0_end")
    a("ds_read_b32 v8, v4 offset:256")
    a("ds_read_b32 v9, v4 offset:512")
    a("ds_read_b32 v10, v4 offset:768")
    a("s_waitcnt lgkmcnt(0)")
    a("v_add_f32 v81, v81, v8")
    a("v_add_f32 v9, v9, v10")
    a("v_add_f32 v81, v81, v9")
    split3(a, "v81", "v8", "v9", "v12", "v13")
    a("v_mov_b32 v14, 0")
    a("v_mov_b32 v15, 0")
    a("s_cmp_eq_u32 s43, 2")
    a("s_cbranch_scc1 P0_csC")
    a("s_cmp_eq_u32 s36, 2")
    a("s_cbranch_scc1 P0_cs4")
    a(f"buffer_store_dwordx2 v[12:13], v80, s[4:7], 0 offen")
    endp(a)
    a.label("P0_csC")
    a("s_cmp_lg_u32 s36, 2")
    a("s_cbranch_scc1 P0_cs4")
    a("v_mov_b32 v16, 0")
    a("v_mov_b32 v17, 0")
    a("v_mov_b32 v18, 0")
    a("v_mov_b32 v19, 0")
    a(f"buffer_store_dwordx4 v[16:19], v80, s[4:7], 0 offen offset:256")
    a.label("P0_cs4")
    a(f"buffer_store_dwordx4 v[12:15], v80, s[4:7], 0 offen")
    endp(a)
    a.label("P0_notC")
    a(f"s_cmp_ge_u32 s2, {NA+NB+NC+ND}")
    a("s_cbranch_scc1 P0_notD")
    a.vm = []
    a(f"s_sub_u32 s37, s2, {NA+NB+NC}")
    sdivmod(a, "s39", "s40", "s37", 9, "s38")
    mksrd(a, 8, "s20", "s21", D * D * 2)
    a("s_lshl_b32 s38, s40, 6")
    a("v_add_u32 v7, s38, v0")
    a("v_lshlrev_b32 v1, 1, v7")
    a("s_mul_i32 s41, s39, 144")
    a("s_lshl_b32 s38, s3, 2")
    a("s_add_u32 s42, s41, s38")
    a(f"s_mul_i32 s42, s42, {D*2}")
    a("s_lshr_b32 s38, s3, 1")
    a("s_mul_i32 s38, s38, 18")
    a("s_add_u32 s41, s41, s38")
    a("s_and_b32 s38, s3, 1")
    a("s_add_u32 s41, s41, s38")
    a("s_add_u32 s41, s41, 16")
    a(f"s_mul_i32 s41, s41, {D*2}")
    for ks in range(4):
        for j in range(8):
            row = 36 * ks + 18 * (j >> 2) + (j & 3)
            a(f"s_add_u32 s13, s42, {row*D*2}")
            a(f"buffer_load_ushort v{8+ks*8+j}, v1, s[8:11], s13 offen", tag=("g", ks))
    for j in range(4):
        a(f"s_add_u32 s13, s41, {36*j*D*2}")
        a(f"buffer_load_ushort v{40+j}, v1, s[8:11], s13 offen", tag=("g", 4))
    a("s_lshl_b32 s38, s40, 2")
    a("v_add_u32 v7, s38, v6")
    a("v_mul_u32_u24 v2, 57, v7")
    a("v_lshrrev_b32 v2, 9, v2")
    a("v_mul_u32_u24 v3, 9, v2")
    a("v_sub_u32 v3, v7, v3")
    a("v_lshlrev_b32 v2, 2, v2")
    a("v_add_u32 v2, s39, v2")
    a("v_mad_u32_u24 v2, v2, 45, v3")
    a("s_lshl_b32 s38, s3, 8")
    a(f"s_add_u32 s38, s38, {WO}")
    a("v_lshl_add_u32 v3, v5, 4, s38")
    a("v_lshl_add_u32 v2, v2, 10, v3")
    a("v_mov_b32 v74, 0")
    a("v_mov_b32 v75, 0")
    for ks in range(5):
        a.wait_vm(("g", ks))
        for r in range(4 if ks < 4 else 2):
            b = 8 + ks * 8 + 2 * r
            a(f"v_lshl_or_b32 v{56+ks*4+r}, v{b+1}, 16, v{b}")
        a(f"s_mov_b32 s38, {ks*9*KB}")
        a(f"buffer_store_dwordx4 v[{56+ks*4}:{59+ks*4}], v2, s[4:7], s38 offen {STORE_MOD}", tag="st")
    endp(a)
    a.label("P0_notD")
    a(f"s_cmp_ge_u32 s2, {NA+NB+NC+ND+NE}")
    a("s_cbranch_scc1 P0_zero")
    a.vm = []
    a(f"s_sub_u32 s37, s2, {NA+NB+NC+ND}")
    a("s_lshl_b32 s37, s37, 2")
    a("s_add_u32 s37, s37, s3")
    mksrd(a, 8, "s16", "s17", XBYTES)
    a("s_lshl_b32 s38, s37, 3")
    a("v_and_b32 v5, 7, v0")
    a("v_lshrrev_b32 v6, 3, v0")
    a("v_add_u32 v7, s38, v5")
    a("s_lshr_b32 s39, s37, 2")
    a("s_and_b32 s40, s39, 3")
    a("s_lshr_b32 s41, s40, 1")
    a("s_cmp_eq_u32 s41, 0")
    a("s_cselect_b32 s42, 10, 8")
    a("v_lshrrev_b32 v2, 1, v6")
    a("v_mul_u32_u24 v2, 18, v2")
    a("v_and_b32 v3, 1, v6")
    a("v_mad_u32_u24 v2, v3, s42, v2")
    a("v_mul_u32_u24 v1, 1152, v7")
    a("v_lshl_add_u32 v1, v2, 4, v1")
    a("v_cmp_ne_u32 vcc, s41, v3")
    a(f"v_mov_b32 v4, {OOB}")
    a("v_cndmask_b32 v4, v1, v4, vcc")
    for i in range(10):
        a(f"buffer_load_dwordx4 v[{8+4*i}:{11+4*i}], {'v1' if i < 8 else 'v4'}, s[8:11], 0 offen offset:{16*i} {LOAD_MOD}", tag=("x", i))
    a("s_mul_i32 s39, s39, 36864")
    a(f"s_add_u32 s39, s39, {L0+XA}")
    a("v_and_b32 v1, 31, v7")
    a("v_lshlrev_b32 v1, 4, v1")
    a("v_lshl_add_u32 v1, v2, 9, v1")
    a(f"v_mov_b32 v4, {OOB}")
    a("v_cndmask_b32 v4, v1, v4, vcc")
    a("s_mov_b32 s48, 0x3f803f80")
    a("v_mov_b32 v81, 0")
    a("v_mov_b32 v82, 0")
    a(f"v_mov_b32 v83, {f2u(1.0/48)}")
    a(f"v_mov_b32 v84, {f2u(1.0/32)}")
    a("v_cndmask_b32 v83, v83, v84, vcc")
    for i in range(10):
        a.wait_vm(("x", i))
        if i == 8:
            a("s_add_u32 s39, s39, 4096")
        a(f"buffer_store_dwordx4 v[{8+4*i}:{11+4*i}], {'v1' if i < 8 else 'v4'}, s[4:7], s39 offen offset:{(i&7)*512} {STORE_MOD}", tag="st")
        acc = 82 if 4 <= i < 8 else 81
        for r in range(4):
            a(f"v_dot2_f32_bf16 v{acc}, v{8+4*i+r}, s48, v{acc}")
    a("v_mul_f32 v84, v81, v83")
    a(f"v_mul_f32 v86, {f2u(1.0/32)}, v82")
    a("v_mov_b32 v85, 0")
    a("v_mov_b32 v87, 0")
    a("v_mov_b32 v81, 0")
    for r in range(40):
        m, acc = (84, 85) if r < 16 else ((86, 87) if r < 32 else (84, 81))
        a(f"v_lshlrev_b32 v82, 16, v{8+r}")
        a(f"v_and_b32 v83, 0xffff0000, v{8+r}")
        a(f"v_sub_f32 v82, v82, v{m}")
        a(f"v_sub_f32 v83, v83, v{m}")
        a(f"v_fmac_f32 v{acc}, v82, v82")
        a(f"v_fmac_f32 v{acc}, v83, v83")
    a("v_cndmask_b32 v81, v81, 0, vcc")
    a("v_add_f32 v85, v85, v81")
    a("v_lshlrev_b32 v2, 7, v7")
    a("v_lshl_add_u32 v2, v6, 4, v2")
    a("s_and_b32 s40, s40, 1")
    a("s_lshl_b32 s40, s40, 3")
    a(f"s_add_u32 s39, s40, {L0+STA}")
    a("s_xor_b32 s40, s40, 8")
    a(f"s_add_u32 s40, s40, {L0+STA}")
    a(f"buffer_store_dwordx2 v[84:85], v2, s[4:7], s39 offen")
    a(f"buffer_store_dwordx2 v[86:87], v2, s[4:7], s40 offen")
    endp(a)
    a.label("P0_zero")
    a(f"s_sub_u32 s37, s2, {NA+NB+NC+ND+NE}")
    a("s_lshr_b32 s38, s37, 2")
    a(f"s_mul_i32 s38, s38, {LSTRIDE}")
    a("s_and_b32 s39, s37, 3")
    a("s_lshl_b32 s39, s39, 14")
    a("s_add_u32 s38, s38, s39")
    a("s_lshl_b32 s39, s3, 12")
    a("s_add_u32 s38, s38, s39")
    a(f"s_add_u32 s38, s38, {L0+KV}")
    a("v_lshlrev_b32 v1, 4, v0")
    for r in range(4):
        a(f"v_mov_b32 v{8+r}, 0")
    for r in range(4):
        a(f"buffer_store_dwordx4 v[8:11], v1, s[4:7], s38 offen offset:{1024*r}")
    a.label("P0_end")
    if Asm.STAMPS:
        a("s_waitcnt vmcnt(0)")
        a.stamp(9, True)
        a("s_mov_b64 exec, -1")
        a("s_lshl_b32 s60, s2, 2")
        a("s_add_u32 s60, s60, s3")
        a("s_lshl_b32 s60, s60, 3")
        a(f"s_add_u32 s60, s60, {DIAG + (8 << 20)}")
        a("v_mov_b32 v8, s80")
        a("v_mov_b32 v9, s82")
        a("v_mov_b32 v10, 0")
        a("buffer_store_dwordx2 v[8:9], v10, s[4:7], s60 offen")
    a.label("P0_exit")
    a("s_endpgm")
    return dict(name=name, grid=P0_WGS, block=256, lds=1024+4*6144, vgpr=88, agpr=0)


import struct


def f2u(x):
    return "0x%08x" % struct.unpack("<I", struct.pack("<f", x))[0]
```

```python
S, D, F = 2048, 576, 4608
KB = 1024
UA = 4


def _al(x, a=4096):
    return (x + a - 1) // a * a


_off = 0


def _alloc(n):
    global _off
    o = _off
    _off = _al(_off + n)
    return o


WGU = _alloc(288 * 36 * KB)
CSGU = _alloc(288 * KB)
WD = _alloc(16 * 324 * KB)
WQKV = _alloc(16 * 19 * 7 * KB)
WO = _alloc(16 * 45 * KB)
XBYTES = S * D * 2
KVROW = 96
KVHEAD = 19 * KVROW
KVBYTES = 65536
FLG = 61440
L0 = _off
XA = _alloc(XBYTES) - L0
STA = _alloc(S * 128) - L0
PQ = _alloc(64 * 16 * 5 * 512) - L0
KV = _alloc(KVBYTES) - L0
X1 = _alloc(XBYTES) - L0
ST1 = _alloc(S * 64) - L0
HB = _alloc(S * F * 2) - L0
PART = _alloc(4 * S * D * 4) - L0
LSTRIDE = _off - L0
WS_END = L0 + 2 * LSTRIDE
WS_BYTES = 256 << 20
DIAG = 200 << 20
assert WS_END < WS_BYTES
OOB = 0x20000000


def wd_pos(unit, s):
    return 0 if unit == 8 else 1 + 2 * (((unit >> 1) - s - 1) & 3) + (unit & 1)


def wd_streampos(unit, ks, s):
    p = wd_pos(unit, s)
    return ks * UA + p if p < UA else p * 36 + ks


def sta_counts(tt32):
    return [32 + 16 * ((j & 3) == (tt32 & 3)) for j in range(16)]
```
